```python
import torch

def _softmax(x, axis=-1):
    return torch.softmax(x, dim=axis)

def _gelu(x):
    return torch.nn.functional.gelu(x, approximate='tanh')

def _silu(x):
    return torch.nn.functional.silu(x)

def _sigmoid(x):
    return torch.sigmoid(x)

def _layernorm(x, axis=-1, eps=1e-05):
    m = x.mean(dim=axis, keepdim=True)
    v = x.var(dim=axis, keepdim=True, unbiased=False)
    return (x - m) / torch.sqrt(v + eps)

def _scatter_add(tgt, idx, src, axis=0):
    return tgt.clone().index_add_(axis, idx, src)

def _segment_sum(src, seg, n):
    out = torch.zeros((n,) + src.shape[1:], dtype=src.dtype)
    return out.index_add_(0, seg, src)

def _pad(x, pw):
    flat = tuple((v for pair in reversed(pw) for v in pair))
    return torch.nn.functional.pad(x, flat)
kernel_name = 'recurrent_scan__memory_aug_recurrent_mem_tr__glu_gated_bilinear__prompt'

def setup_inputs():

    _w = lambda a: (lambda t: t.to(torch.bfloat16) if t.is_floating_point() else t)(torch.as_tensor(a))

    def _A_setup():
        B, S, Dm = (1, 2048, 512)
        H, Dh = (32, 128)
        M, seg = (8, 32)
        seg = min(seg, S)
        S = S // seg * seg
        return {'x': _w((lambda *s: torch.randn(*s, dtype=torch.bfloat16) * 0.1)(B, S, Dm)), 'mem0': _w((lambda *s: torch.randn(*s, dtype=torch.bfloat16) * 1.6)(B, M, Dm)), 'Wq': _w((lambda *s: torch.randn(*s, dtype=torch.bfloat16) * 0.8)(Dm, H, Dh) * Dm ** (-0.5)), 'Wk': _w((lambda *s: torch.randn(*s, dtype=torch.bfloat16) * 0.8)(Dm, H, Dh) * Dm ** (-0.5)), 'Wv': _w((lambda *s: torch.randn(*s, dtype=torch.bfloat16) * 1.6)(Dm, H, Dh) * Dm ** (-0.5)), 'Wo': _w((lambda *s: torch.randn(*s, dtype=torch.bfloat16) * 1.6)(H, Dh, Dm) * (H * Dh) ** (-0.5)), 'seg_len': seg}
    _A_in = _A_setup()

    def _B_setup():
        B, S, D, F = (1, 2048, 512, 1792)
        return {'x': _w((lambda *s: torch.randn(*s, dtype=torch.bfloat16) * 0.1)(B, S, D)), 'w_gate': _w((lambda *s: torch.randn(*s, dtype=torch.bfloat16) * 0.4)(D, F) * D ** (-0.5)), 'w_up': _w((lambda *s: torch.randn(*s, dtype=torch.bfloat16) * 0.4)(D, F) * D ** (-0.5)), 'w_down': _w((lambda *s: torch.randn(*s, dtype=torch.bfloat16) * 0.4)(F, D) * F ** (-0.5))}
    _B_in = _B_setup()
    return {'A_x': _A_in['x'], 'A_mem0': _A_in['mem0'], 'A_Wq': _A_in['Wq'], 'A_Wk': _A_in['Wk'], 'A_Wv': _A_in['Wv'], 'A_Wo': _A_in['Wo'], 'A_seg_len': _A_in['seg_len'], 'B_x': _B_in['x'], 'B_w_gate': _B_in['w_gate'], 'B_w_up': _B_in['w_up'], 'B_w_down': _B_in['w_down']}

def reference(A_x, A_mem0, A_Wq, A_Wk, A_Wv, A_Wo, A_seg_len, B_x, B_w_gate, B_w_up, B_w_down):

    def _A_ref(x, mem0, Wq, Wk, Wv, Wo, seg_len):
        B, S, Dm = x.shape
        H, Dh = (Wq.shape[1], Wq.shape[2])
        M = mem0.shape[1]
        scale = Dh ** (-0.5)
        n_seg = S // seg_len
        L = M + seg_len
        idx = torch.arange(L)
        mask = (idx[:, None] < M) | (idx[:, None] >= idx[None, :])
        mem = mem0
        outs = []
        for s in range(n_seg):
            xs = x[:, s * seg_len:(s + 1) * seg_len, :].clone()
            h = torch.concatenate([mem, xs], axis=1)
            q = torch.einsum('btd,dhe->bhte', h, Wq)
            k = torch.einsum('btd,dhe->bhte', h, Wk)
            v = torch.einsum('btd,dhe->bhte', h, Wv)
            scores = torch.einsum('bhqe,bhke->bhqk', q, k) * scale
            scores = torch.where(mask[None, None], scores, -1000000000.0)
            p = _softmax(scores, axis=-1)
            o = torch.einsum('bhqk,bhke->bhqe', p, v)
            o = torch.einsum('bhte,hed->btd', o, Wo)
            mem = o[:, :M, :].clone()
            outs.append(o[:, M:, :])
        return torch.concatenate(outs, axis=1)

    def _B_ref(x, w_gate, w_up, w_down):
        g = torch.einsum('bsd,df->bsf', x, w_gate)
        u = torch.einsum('bsd,df->bsf', x, w_up)
        h = g * u
        return torch.einsum('bsf,fd->bsd', h, w_down)
    x = A_x
    xn = _layernorm(x, axis=-1)
    s = _A_ref(xn, A_mem0, A_Wq, A_Wk, A_Wv, A_Wo, A_seg_len)
    g = _silu(_B_ref(xn, B_w_gate, B_w_up, B_w_down))
    return x + s * g
```

```python
import re

REG_RE = re.compile(r'\b([vas])(\d+)\b|\b([vas])\[(\d+):(\d+)\]|\b(vcc|exec|m0|scc)\b')

def regs_of(op):
    out = set()
    for m in REG_RE.finditer(op):
        if m.group(1): out.add((m.group(1), int(m.group(2))))
        elif m.group(3):
            for i in range(int(m.group(4)), int(m.group(5)) + 1): out.add((m.group(3), i))
        elif m.group(6): out.add((m.group(6), 0))
    return out

def split_ops(s):
    ops = []; depth = 0; cur = ''
    for ch in s:
        if ch in '[(': depth += 1
        if ch in '])': depth -= 1
        if ch == ',' and depth == 0: ops.append(cur.strip()); cur = ''
        else: cur += ch
    if cur.strip(): ops.append(cur.strip())
    return ops

TRANS = ('v_exp_f32', 'v_log_f32', 'v_rcp_f32', 'v_rsq_f32', 'v_sqrt_f32', 'v_sin_f32', 'v_cos_f32')

class Ins:
    __slots__ = ('text', 'op', 'kind', 'w', 'r', 'A', 'B', 'C', 'states', 'wide_store', 'dpp', 'passes', 'sdata')
    def __init__(self, text):
        self.text = text
        t = text.split(';')[0].strip()
        parts = t.split(None, 1)
        self.op = parts[0]
        ops = split_ops(parts[1]) if len(parts) > 1 else []
        self.w = set(); self.r = set(); self.A = set(); self.B = set(); self.C = set()
        self.states = 1; self.wide_store = False; self.dpp = False; self.passes = 0; self.sdata = set()
        op = self.op
        if op == 's_nop':
            self.kind = 'nop'; self.states = int(ops[0], 0) + 1
        elif op.startswith('v_mfma') or op.startswith('v_smfmac'):
            self.kind = 'mfma'
            self.w = regs_of(ops[0]); self.A = regs_of(ops[1]); self.B = regs_of(ops[2])
            last = ops[3].split()[0]
            if op.startswith('v_smfmac'):
                self.C = set(self.w); self.B |= regs_of(last)
            else:
                self.C = regs_of(last)
            self.r = self.A | self.B | self.C
            self.passes = 8 if '32x32' in op else 4
        elif op.startswith('v_'):
            self.kind = 'valu'
            if 'dpp' in op or 'quad_perm' in t or 'row_' in t: self.dpp = True
            if op.startswith('v_permlane'):
                self.w = regs_of(ops[0]) | regs_of(ops[1]); self.r = set(self.w)
            elif op.startswith('v_cmp'):
                self.w = regs_of(ops[0])
                for o in ops[1:]: self.r |= regs_of(o)
            else:
                self.w = regs_of(ops[0])
                rest = ops[1:]
                if op.startswith(('v_add_co', 'v_sub_co', 'v_addc_co', 'v_subb_co')):
                    self.w |= regs_of(ops[1]); rest = ops[2:]
                for o in rest: self.r |= regs_of(o.split()[0] if (self.dpp and o is rest[-1]) else o)
                if op.startswith(('v_fmac', 'v_dot2c', 'v_pk_fmac')) or self.dpp: self.r |= self.w
        elif op.startswith(('global_', 'buffer_', 'flat_')):
            self.kind = 'vmem'
            if 'load' in op and ' lds' not in t and '_lds_' not in op:
                self.w = regs_of(ops[0])
                for o in ops[1:]: self.r |= regs_of(o)
            elif 'atomic' in op and ' sc0' in t and op.startswith('global'):
                self.w = regs_of(ops[0])
                for o in ops[1:]: self.r |= regs_of(o)
            else:
                for o in ops: self.r |= regs_of(o)
                if 'store' in op and ('x4' in op or 'x3' in op):
                    self.wide_store = True
                    self.sdata = regs_of(ops[1] if op.startswith('global') else ops[0])
        elif op.startswith('ds_'):
            self.kind = 'ds'
            if op.startswith(('ds_read', 'ds_bpermute', 'ds_permute', 'ds_swizzle')):
                self.w = regs_of(ops[0])
                for o in ops[1:]: self.r |= regs_of(o)
            else:
                for o in ops: self.r |= regs_of(o)
        elif op.startswith('s_'):
            self.kind = 'salu'
            if ops and not op.startswith(('s_cmp', 's_cbranch', 's_branch', 's_waitcnt', 's_barrier', 's_sleep', 's_setprio', 's_endpgm', 's_bitcmp')):
                self.w = regs_of(ops[0])
                for o in ops[1:]: self.r |= regs_of(o)
            else:
                for o in ops: self.r |= regs_of(o)
        else:
            self.kind = 'other'

def vg(s): return {x for x in s if x[0] in 'va'}
def sg(s): return {x for x in s if x[0] == 's' or x[0] == 'vcc'}

def need(p, c):
    n = 0
    if p.kind == 'valu':
        pw = vg(p.w)
        if c.kind == 'mfma' and pw & c.r: n = max(n, 2)
        if c.kind == 'valu':
            if c.op.startswith('v_permlane') and pw & c.r: n = max(n, 2)
            if c.dpp and pw & c.r: n = max(n, 2)
            if c.op.startswith(('v_readlane', 'v_readfirstlane')) and pw & c.r: n = max(n, 1)
        if re.sub(r'_e(32|64)$', '', p.op) in TRANS and c.kind in ('valu', 'mfma', 'vmem', 'ds') and pw & c.r: n = max(n, 1)
        ps = sg(p.w)
        if ps:
            if c.kind == 'valu' and ps & c.r: n = max(n, 4 if c.op.startswith(('v_readlane', 'v_writelane')) else 2)
            if c.kind == 'valu' and ('vcc', 0) in ps and c.op.startswith('v_cndmask') : n = max(n, 2)
            if c.kind == 'vmem' and ps & c.r: n = max(n, 5)
            if c.kind == 'salu' and ps & c.r and not c.op.startswith('s_cbranch'): n = max(n, 1)
    if p.kind == 'mfma':
        big = p.passes == 8
        D = p.w
        if c.kind == 'mfma':
            if D & (c.A | c.B): n = max(n, 12 if big else 8)
            if D & c.C:
                if not (D == c.C and p.passes == c.passes): n = max(n, 10 if big else 6)
            elif D & c.w and D != c.w: n = max(n, 10 if big else 6)
        elif c.kind == 'valu':
            if D & (c.r | c.w): n = max(n, 12 if big else 8)
            if p.C & c.w: n = max(n, 7 if big else 3)
        elif c.kind in ('vmem', 'ds'):
            if D & (c.r | c.w): n = max(n, 12 if big else 8)
    if p.wide_store:
        if c.kind in ('valu',) and p.sdata & c.w: n = max(n, 2)
        elif p.sdata & c.w: n = max(n, 1)
    if p.kind == 'salu' and ('m0', 0) in p.w and c.kind == 'vmem' and (' lds' in c.text or '_lds_' in c.op): n = max(n, 1)
    return n

class Asm:
    def __init__(self):
        self.L = []; self.uid = 0
    def __call__(self, txt):
        for line in txt.split('\n'):
            line = line.strip()
            if line: self.L.append(line)
    def lab(self, base):
        self.uid += 1
        return "L_%s_%d" % (base, self.uid)
    def finish(self):
        out = []; hist = []
        for line in self.L:
            s = line.split(';')[0].strip()
            if not s or s.endswith(':') or s.startswith('.'):
                out.append(line); continue
            ins = Ins(line)
            req = 0
            dist = 0; nm = 0; tail = 0
            for p in reversed(hist):
                nd = need(p, ins)
                d = dist
                if p.kind == 'mfma' and nm > 0: d = max(d, 4 * nm - 1 + tail)
                if nd > d: req = max(req, nd - d)
                dist += p.states
                if p.kind == 'mfma': nm += 1
                elif nm == 0: tail += p.states
                if dist >= 20: break
            while req > 0:
                k = min(req, 16)
                nop = Ins("s_nop %d" % (k - 1)); out.append("    " + nop.text); hist.append(nop); req -= k
            out.append("    " + line); hist.append(ins)
            if len(hist) > 40: hist = hist[-24:]
        return "\n".join(out) + "\n"
```

```python
import sys, math, struct
from asmlib import Asm
from layout import *

NAME = "recurrent_scan__memory_aug_recurrent_mem_tr__glu_gated_bilinear__prompt"
SPIN_MAX = 0x400000

def f32bits(x): return struct.unpack('<I', struct.pack('<f', x))[0]
def vr(b, n=1): return "v%d" % b if n == 1 else "v[%d:%d]" % (b, b + n - 1)
def ar(b, n=1): return "a%d" % b if n == 1 else "a[%d:%d]" % (b, b + n - 1)
def sr(b, n=1): return "s%d" % b if n == 1 else "s[%d:%d]" % (b, b + n - 1)

class Cnt:
    def __init__(self, a, name, mx): self.a = a; self.name = name; self.q = []; self.mx = mx
    def issue(self, tag): self.q.append(tag)
    def wait(self, tag):
        if tag not in self.q: return
        idx = max(i for i, t in enumerate(self.q) if t == tag)
        n = len(self.q) - 1 - idx
        assert n <= self.mx, (self.name, n)
        self.a("s_waitcnt %s(%d)" % (self.name, n))
        self.q = self.q[idx + 1:]
    def waitall(self):
        self.a("s_waitcnt %s(0)" % self.name); self.q = []
    def reset(self): self.q = []

def kd(name, vgpr, sgpr, accum):
    return f"""
.section .rodata,"a"
.p2align 6
.amdhsa_kernel {name}
  .amdhsa_next_free_vgpr {vgpr}
  .amdhsa_next_free_sgpr {sgpr}
  .amdhsa_accum_offset {accum}
  .amdhsa_group_segment_fixed_size 0
  .amdhsa_kernarg_size 112
  .amdhsa_user_sgpr_count 2
  .amdhsa_user_sgpr_kernarg_segment_ptr 1
  .amdhsa_system_sgpr_workgroup_id_x 1
  .amdhsa_float_denorm_mode_32 3
.end_amdhsa_kernel
.text
"""

def head(a, name):
    a(f".globl {name}\n.p2align 8\n.type {name},@function\n{name}:")

def rnd_bf16(a, dst, src):
    a(f"v_cvt_pk_bf16_f32 {dst}, {src}, {src}\nv_and_b32 {dst}, 0xffff0000, {dst}")

def xlane_sum_g(a, v, t, op="v_add_f32"):
    a(f"v_mov_b32 {t}, {v}\nv_permlane16_swap_b32 {v}, {t}\n{op} {v}, {v}, {t}")
    a(f"v_mov_b32 {t}, {v}\nv_permlane32_swap_b32 {v}, {t}\n{op} {v}, {v}, {t}")

def gen_prep(a):
    head(a, "prep_kernel")
    a("s_cmp_ge_u32 s2, 256\ns_cbranch_scc1 L_prep_end")
    a("s_load_dwordx4 s[4:7], s[0:1], 0\ns_load_dwordx2 s[8:9], s[0:1], 104")
    a("v_and_b32 v1, 63, v0\nv_lshrrev_b32 v2, 6, v0\nv_and_b32 v3, 15, v0\nv_bfe_u32 v4, v0, 4, 2")
    a("s_cmp_ge_u32 s2, 128\ns_cbranch_scc1 L_prep_init")
    a("s_lshl_b32 s10, s2, 14")
    a("v_lshlrev_b32 v5, 10, v3\nv_lshl_add_u32 v5, v2, 8, v5\nv_lshl_add_u32 v5, v4, 4, v5\nv_add_u32 v5, s10, v5")
    a("s_waitcnt lgkmcnt(0)")
    for j in range(4): a(f"global_load_dwordx4 {vr(48+4*j,4)}, v5, s[4:5] offset:{64*j}")
    a("v_lshlrev_b32 v6, 2, v3\nv_lshl_add_u32 v7, v2, 6, v6")
    a("s_waitcnt vmcnt(0)")
    for i in range(16):
        a(f"v_lshlrev_b32 v{16+2*i}, 16, v{48+i}\nv_and_b32 v{17+2*i}, 0xffff0000, v{48+i}")
    a("v_add_f32 v8, v16, v17")
    for i in range(2, 32): a(f"v_add_f32 v8, v8, v{16+i}")
    xlane_sum_g(a, "v8", "v9")
    a("ds_write_b32 v7, v8\ns_waitcnt lgkmcnt(0)\ns_barrier")
    for j in range(4): a(f"ds_read_b32 v{10+j}, v6 offset:{64*j}")
    a("s_waitcnt lgkmcnt(0)\nv_add_f32 v10, v10, v11\nv_add_f32 v12, v12, v13\nv_add_f32 v10, v10, v12")
    a(f"v_mul_f32 v10, {hex(f32bits(1/512))}, v10")
    a("v_sub_f32 v9, v16, v10\nv_mul_f32 v8, v9, v9")
    for i in range(1, 32): a(f"v_sub_f32 v9, v{16+i}, v10\nv_fmac_f32 v8, v9, v9")
    xlane_sum_g(a, "v8", "v9")
    a("ds_write_b32 v7, v8 offset:256\ns_waitcnt lgkmcnt(0)\ns_barrier")
    for j in range(4): a(f"ds_read_b32 v{11+j}, v6 offset:{256+64*j}")
    a("s_waitcnt lgkmcnt(0)\nv_add_f32 v11, v11, v12\nv_add_f32 v13, v13, v14\nv_add_f32 v11, v11, v13")
    a(f"v_mul_f32 v11, {hex(f32bits(1/512))}, v11")
    rnd_bf16(a, "v11", "v11")
    a(f"v_add_f32 v11, {hex(f32bits(1e-5))}, v11"); rnd_bf16(a, "v11", "v11")
    a("v_sqrt_f32 v11, v11"); rnd_bf16(a, "v11", "v11")
    a("v_rcp_f32 v12, v11")
    rnd_bf16(a, "v10", "v10")
    for i in range(16):
        x0, x1 = 16 + 2 * i, 17 + 2 * i
        a(f"v_sub_f32 v{x0}, v{x0}, v10\nv_sub_f32 v{x1}, v{x1}, v10\nv_cvt_pk_bf16_f32 v8, v{x0}, v{x1}")
        a(f"v_lshlrev_b32 v{x0}, 16, v8\nv_and_b32 v{x1}, 0xffff0000, v8")
        for x in (x0, x1):
            a(f"v_mul_f32 v8, v{x}, v12\nv_fma_f32 v9, -v8, v11, v{x}\nv_fma_f32 v{x}, v9, v12, v8")
        a(f"v_cvt_pk_bf16_f32 v{48+i}, v{x0}, v{x1}")
    a("v_lshlrev_b32 v5, 4, v1\nv_lshl_add_u32 v5, v2, 12, v5\nv_add_u32 v5, s10, v5")
    for j in range(4): a(f"global_store_dwordx4 v5, {vr(48+4*j,4)}, s[8:9] offset:{1024*j}")
    a("s_endpgm")
    a("L_prep_init:")
    a("s_sub_u32 s10, s2, 128\ns_lshl_b32 s11, s10, 12\nv_lshlrev_b32 v5, 4, v0\nv_add_u32 v5, s11, v5")
    a("v_mov_b32 v8, 0x02020202\nv_mov_b32 v9, v8\nv_mov_b32 v10, v8\nv_mov_b32 v11, v8")
    a("v_mov_b32 v12, -1\nv_mov_b32 v13, -1\nv_mov_b32 v14, -1\nv_mov_b32 v15, -1")
    a("v_mov_b32 v16, 0\nv_mov_b32 v17, 0\nv_mov_b32 v18, 0\nv_mov_b32 v19, 0")
    a(f"v_add_u32 v6, {hex(PBUF)}, v5\nv_add_u32 v7, {hex(MBUF+8192)}, v5\nv_add_u32 v20, {hex(FLAGS)}, v5")
    a("s_waitcnt lgkmcnt(0)")
    a("global_store_dwordx4 v6, v[12:15], s[8:9]\nglobal_store_dwordx4 v7, v[12:15], s[8:9]\nv_add_u32 v6, 0x80000, v6\nglobal_store_dwordx4 v6, v[12:15], s[8:9]")
    a(f"s_cmp_ge_u32 s10, {FLAGS_SIZE//4096}\ns_cbranch_scc1 L_prep_nf")
    a("global_store_dwordx4 v20, v[16:19], s[8:9]")
    a("L_prep_nf:")
    a("s_cmp_lt_u32 s10, 126\ns_cbranch_scc1 L_prep_end")
    a("s_sub_u32 s11, s10, 126\ns_lshl_b32 s11, s11, 2\nv_add_u32 v21, s11, v2")
    a("v_and_b32 v22, 1, v21\nv_lshlrev_b32 v22, 8, v22\nv_lshrrev_b32 v23, 1, v4\nv_lshl_add_u32 v22, v23, 7, v22")
    a("v_lshrrev_b32 v23, 3, v3\nv_lshl_add_u32 v22, v23, 6, v22\nv_lshrrev_b32 v23, 1, v21\nv_lshl_add_u32 v22, v23, 1, v22")
    a("v_and_b32 v23, 1, v4\nv_add_u32 v22, v22, v23\nv_and_b32 v23, 7, v3\nv_lshl_add_u32 v22, v23, 9, v22\nv_lshlrev_b32 v22, 1, v22")
    for c in range(8): a(f"global_load_ushort v{24+c}, v22, s[6:7] offset:{16*c}")
    a("s_waitcnt vmcnt(0)")
    for c in range(4): a(f"v_lshl_or_b32 v{32+c}, v{25+2*c}, 16, v{24+2*c}\nv_min_u32 v{32+c}, 0xfffffffe, v{32+c}")
    a(f"v_lshlrev_b32 v22, 10, v21\nv_lshl_add_u32 v22, v1, 4, v22\nv_add_u32 v22, {hex(MBUF)}, v22")
    a("global_store_dwordx4 v22, v[32:35], s[8:9]")
    a("L_prep_end:\ns_endpgm")

S_X, S_WQ, S_WK, S_WV, S_WO = 4, 8, 10, 12, 14
S_WG, S_WU, S_WD, S_OUT, S_DBG, S_WS = 16, 18, 20, 22, 24, 26
S_W, S_RANK, S_XCC, S_WID = 28, 29, 30, 31
S_SRD0, S_SRD1, S_SRD2, S_SRD3 = 48, 52, 56, 60
S_SOFF = 36
S_PLO, S_PHI = 37, 38
S_SPIN = 39
S_T = 40

def set_srd(a, srd, base, nbytes):
    a(f"s_mov_b32 s{srd}, s{base}\ns_and_b32 s{srd+1}, s{base+1}, 0xffff\ns_mov_b32 s{srd+2}, {hex(nbytes)}\ns_mov_b32 s{srd+3}, 0x20000")

def load_pairs(a, items, tmp, depth, width=1, fl=""):
    cur = [None]
    sfx = {1: "dword", 4: "dwordx4"}[width]
    def ld(dst, srd, voff, off):
        if cur[0] is None or not (0 <= off - cur[0] <= 4095):
            cur[0] = off; a(f"s_mov_b32 s{S_SOFF}, {hex(off)}")
        o = off - cur[0]
        a(f"buffer_load_{sfx} {vr(dst,width)}, {voff}, {sr(srd,4)}, s{S_SOFF} offen" + (f" offset:{o}" if o else "") + " " + fl)
    n = len(items)
    assert 2 * depth <= 62
    def slot(i): return tmp + 4 + (i % depth) * 2 * width
    def issue(i):
        it = items[i]; b = slot(i)
        ld(b, it[0], it[1], it[2]); ld(b + width, it[0], it[1], it[3])
    for i in range(min(depth, n)): issue(i)
    for i in range(n):
        outstanding = min(depth, n - i)
        a(f"s_waitcnt vmcnt({2*(outstanding-1)})")
        b = slot(i)
        dests, post = items[i][4], items[i][5]
        for x in range(width):
            for hh, sel in ((0, S_PLO), (1, S_PHI)):
                d = dests[2 * x + hh]
                if d[0] == 'v': a(f"v_perm_b32 {d}, v{b+width+x}, v{b+x}, s{sel}")
                else: a(f"v_perm_b32 v{tmp+hh}, v{b+width+x}, v{b+x}, s{sel}\nv_accvgpr_write_b32 {d}, v{tmp+hh}")
        if post: post()
        if i + depth < n: issue(i + depth)

def spin_check(a, fail="L_fail"):
    a(f"s_add_u32 s{S_SPIN}, s{S_SPIN}, 1\ns_cmp_gt_u32 s{S_SPIN}, {hex(SPIN_MAX)}\ns_cbranch_scc1 {fail}")

def wait_flag(a, voff, base, val, vtmp, cmp="v_cmp_ne_u32", sleep=0, width=1):
    L = a.lab("wf")
    a(f"{L}:\nglobal_load_dword {vtmp}, {voff}, {sr(base,2)} sc1")
    spin_check(a)
    if sleep: a(f"s_sleep {sleep}")
    a(f"s_waitcnt vmcnt(0)\n{cmp} vcc, {val}, {vtmp}\ns_cbranch_vccnz {L}")


def rt_stamp(a, opts, idx, who):
    if opts.get('dbgstamp'):
        k = opts['dbgstamp'].get((getattr(a, 'role', 'x'), idx))
        if k is None: return
        a(f"s_memrealtime s[32:33]\ns_waitcnt lgkmcnt(0)\nv_mov_b32 v126, {4*(8+k)}\nv_mov_b32 v127, s32\ns_mov_b64 exec, 1\nglobal_atomic_umax v126, v127, {sr(S_DBG,2)} sc1")
        if k == 1: a(f"v_not_b32 v127, v127\nv_mov_b32 v126, 32\nglobal_atomic_umax v126, v127, {sr(S_DBG,2)} sc1")
        a("s_mov_b64 exec, -1")
        return
    if not opts.get('prof'): return
    a(f"s_memrealtime s[32:33]\ns_lshl_b32 s34, s{who}, 8\ns_lshl_b32 s35, s{S_W}, 6\ns_add_u32 s34, s34, s35\ns_add_u32 s34, s34, {hex(PROF + idx*4)}\ns_waitcnt lgkmcnt(0)")
    a(f"v_mov_b32 v126, s34\nv_mov_b32 v127, s32\nglobal_store_dword v126, v127, {sr(S_WS,2)}\ns_waitcnt vmcnt(0)")

D_RANK0 = 32
D_FAIL, D_CINIT, D_LN, D_FINIT, D_HCNT = 16, 36, 40, 44, 48

def gen_ln(a, s_tile, lds_base):
    T = S_T
    a(f"s_lshl_b32 s{T}, s{s_tile}, 14\ns_lshl_b32 s{T+1}, s{S_W}, 8\ns_add_u32 s{T+1}, s{T+1}, s{T}")
    a(f"v_lshlrev_b32 v65, 10, v1\nv_lshl_add_u32 v65, v2, 4, v65\nv_add_u32 v65, s{T+1}, v65")
    for j in range(4): a(f"global_load_dwordx4 {vr(48+4*j,4)}, v65, {sr(S_X,2)} offset:{64*j}")
    a(f"v_lshlrev_b32 v66, 2, v1\nv_add_u32 v66, {lds_base}, v66\ns_lshl_b32 s{T+1}, s{S_W}, 6\nv_add_u32 v67, s{T+1}, v66")
    a("s_waitcnt vmcnt(0)")
    for i in range(16):
        a(f"v_lshlrev_b32 v{16+2*i}, 16, v{48+i}\nv_and_b32 v{17+2*i}, 0xffff0000, v{48+i}")
    a("v_add_f32 v68, v16, v17")
    for i in range(2, 32): a(f"v_add_f32 v68, v68, v{16+i}")
    xlane_sum_g(a, "v68", "v69")
    a("ds_write_b32 v67, v68\ns_waitcnt lgkmcnt(0)\ns_barrier")
    for j in range(4): a(f"ds_read_b32 v{70+j}, v66 offset:{64*j}")
    a("s_waitcnt lgkmcnt(0)\nv_add_f32 v70, v70, v71\nv_add_f32 v72, v72, v73\nv_add_f32 v70, v70, v72")
    a(f"v_mul_f32 v70, {hex(f32bits(1/512))}, v70")
    a("v_sub_f32 v69, v16, v70\nv_mul_f32 v68, v69, v69")
    for i in range(1, 32): a(f"v_sub_f32 v69, v{16+i}, v70\nv_fmac_f32 v68, v69, v69")
    xlane_sum_g(a, "v68", "v69")
    a("ds_write_b32 v67, v68 offset:256\ns_waitcnt lgkmcnt(0)\ns_barrier")
    for j in range(4): a(f"ds_read_b32 v{71+j}, v66 offset:{256+64*j}")
    a("s_waitcnt lgkmcnt(0)\nv_add_f32 v71, v71, v72\nv_add_f32 v73, v73, v74\nv_add_f32 v71, v71, v73")
    a(f"v_mul_f32 v71, {hex(f32bits(1/512))}, v71")
    rnd_bf16(a, "v71", "v71")
    a(f"v_add_f32 v71, {hex(f32bits(1e-5))}, v71"); rnd_bf16(a, "v71", "v71")
    a("v_sqrt_f32 v71, v71"); rnd_bf16(a, "v71", "v71")
    a("v_rcp_f32 v72, v71")
    rnd_bf16(a, "v70", "v70")
    for i in range(16):
        x0, x1 = 16 + 2 * i, 17 + 2 * i
        a(f"v_sub_f32 v{x0}, v{x0}, v70\nv_sub_f32 v{x1}, v{x1}, v70\nv_cvt_pk_bf16_f32 v68, v{x0}, v{x1}")
        a(f"v_lshlrev_b32 v{x0}, 16, v68\nv_and_b32 v{x1}, 0xffff0000, v68")
        for x in (x0, x1):
            a(f"v_mul_f32 v68, v{x}, v72\nv_fma_f32 v69, -v68, v71, v{x}\nv_fma_f32 v{x}, v69, v72, v68")
        a(f"v_cvt_pk_bf16_f32 v{48+i}, v{x0}, v{x1}")
    a(f"s_lshl_b32 s{T+1}, s{S_W}, 12\ns_add_u32 s{T+1}, s{T+1}, s{T}\nv_lshlrev_b32 v65, 4, v0\nv_add_u32 v65, s{T+1}, v65")
    for j in range(4): a(f"global_store_dwordx4 v65, {vr(48+4*j,4)}, {sr(S_WS,2)} offset:{1024*j} sc1")

def dbg_add_wg(a, idx, vt0, vt1):
    L = a.lab("da")
    a(f"s_waitcnt vmcnt(0)\ns_barrier\ns_cmp_lg_u32 s{S_W}, 0\ns_cbranch_scc1 {L}")
    a(f"v_mov_b32 {vt0}, {idx*4}\nv_mov_b32 {vt1}, 1\ns_mov_b64 exec, 1\nglobal_atomic_add {vt0}, {vt1}, {sr(S_DBG,2)} sc1\ns_mov_b64 exec, -1\n{L}:")

def dbg_wait(a, idx, val, vt0, vt1, sleep=1):
    a(f"v_mov_b32 {vt0}, {idx*4}")
    if val > 64:
        a(f"s_mov_b32 s{S_T}, {val}"); val = f"s{S_T}"
    wait_flag(a, vt0, S_DBG, val, vt1, sleep=sleep)

def load_w_lds(a, chunks, vsrc, vrd, tmp, hooks=None, mid=None, fl=""):
    T = S_T
    def issue(ci):
        srd, row0, _ = chunks[ci]
        a(f"s_lshl_b32 s{T}, s{S_W}, 14\ns_add_u32 m0, s{T}, {hex((ci & 1) * 65536)}\ns_mov_b32 s{S_SOFF}, {hex(row0 * 8192)}")
        for k in range(16):
            a(f"buffer_load_dwordx4 {vsrc}, {sr(srd,4)}, s{S_SOFF} offen {fl} lds")
            if k < 15: a(f"s_add_u32 m0, m0, 1024\ns_add_u32 s{S_SOFF}, s{S_SOFF}, {4*8192}")
    n = len(chunks)
    issue(0); issue(1)
    if mid: mid()
    D = 12
    for ci in range(n):
        a(f"s_waitcnt vmcnt({(16 + (12 if (mid and ci == 0) else 0)) if ci + 1 < n else 0})\ns_barrier")
        items = chunks[ci][2]
        lg = Cnt(a, "lgkmcnt", 15)
        def rd(i):
            it = items[i]
            a(f"ds_read2st64_b32 {vr(tmp+4+2*(i%D),2)}, v{it[0] + (ci & 1)} offset0:{it[1]} offset1:{it[2]}"); lg.issue(i)
        for i in range(min(D, len(items))): rd(i)
        for i, it in enumerate(items):
            lg.wait(i)
            b = tmp + 4 + 2 * (i % D)
            for hh, sel in ((0, S_PLO), (1, S_PHI)):
                d = it[3][hh]
                if d[0] == 'v': a(f"v_perm_b32 {d}, v{b+1}, v{b}, s{sel}")
                else: a(f"v_perm_b32 v{tmp+hh}, v{b+1}, v{b}, s{sel}\nv_accvgpr_write_b32 {d}, v{tmp+hh}")
            if i + D < len(items): rd(i + D)
        if ci + 2 < n:
            a("s_barrier"); issue(ci + 2)
        if hooks and ci in hooks: hooks[ci]()
```

```python
from common import *

LOG2E = 1.4426950408889634
SCALE = 128 ** -0.5

NSP = 17
L_MB = 4 * NSP * 2048
L_TQ = L_MB + 8192
L_KX = L_TQ + 4096
L_SEL = L_KX + 8192
assert L_SEL + 1024 <= 163840

V_PFD, V_IDX, V_PST, V_MST, V_WL, V_TW, V_TR, V_LW, V_MBR, V_PF, V_PFS, V_FL, V_ONE, MX, X0, X1 = range(16)
MEM = 16
AQ, AK, AV = 48, 56, 64
WIN = 72
VX = 104
QOP = 112
KXS = 128
WREG0 = 136

S_S = 64
S_P, S_PL, S_PR, S_PB = 66, 68, 70, 72
S_M = 74
S_MS = 76
S_KF, S_VF, S_KM = 78, 80, 82
S_C = 84
S_ONES, S_HALF = 86, 98
S_RING, S_HOFF = 100, 101
S_EM = 44

def frag_table():
    lds = [('q', 0, 0), ('q', 1, 0), ('q', 0, 1), ('q', 1, 1),
           ('k', 0, 2), ('k', 1, 2), ('k', 0, 3), ('k', 1, 3)] + [('o', j, x) for j in (2, 3) for x in range(4)] + [('o', 1, 3)]
    assert len(lds) == NSP
    loc = {f: ('l', i) for i, f in enumerate(lds)}
    regs = [('a', 8 * i) for i in range(32)] + [('v', WREG0 + 8 * i) for i in range(15)]
    allf = [(m, t, u) for m in 'qkv' for u in range(8) for t in range(2)] + [('o', j, x) for j in range(4) for x in range(4)]
    for f in allf:
        if f not in loc: loc[f] = regs.pop(0)
    assert not regs
    return loc

def gen_chain(a, opts):
    T = S_T
    loc = frag_table()
    H = S_RANK
    st = opts.get('chain_st', '')
    prof = opts.get('cyc')
    def stamp(i):
        if prof: a(f"s_memtime s[{48+2*i}:{49+2*i}]")
    LN = 24
    a(f"v_mov_b32 v{LN}, v0\nv_and_b32 v16, 15, v{LN}\nv_lshrrev_b32 v17, 4, v{LN}\nv_lshrrev_b32 v18, 5, v{LN}\nv_and_b32 v19, 1, v17\nv_lshlrev_b32 v23, 4, v{LN}\nv_and_b32 v21, 7, v{LN}")
    a(f"v_lshrrev_b32 v20, 3, v16\nv_lshlrev_b32 v20, 6, v20\nv_lshl_add_u32 v20, v18, 7, v20\nv_add_u32 v20, v20, v19\nv_and_b32 v22, 7, v16\nv_lshl_add_u32 v20, v22, 9, v20\ns_lshl_b32 s{T}, s{S_W}, 1\nv_add_u32 v20, s{T}, v20\nv_lshlrev_b32 v20, 1, v20")
    for uu in range(2):
        for c in range(8): a(f"global_load_ushort v{96+8*uu+c}, v20, s[6:7] offset:{512*uu+16*c}")
    set_srd(a, S_SRD0, S_WQ, 512 * 8192); set_srd(a, S_SRD1, S_WK, 512 * 8192); set_srd(a, S_SRD2, S_WV, 512 * 8192); set_srd(a, S_SRD3, S_WO, 4096 * 1024)
    VO = 112
    a(f"s_lshl_b32 s{T}, s{H}, 8\ns_lshl_b32 s{T+1}, s{S_W}, 19\ns_add_u32 s{T}, s{T}, s{T+1}\nv_lshlrev_b32 v20, 13, v17\nv_lshl_add_u32 v20, v16, 4, v20\nv_add_u32 v{VO}, s{T}, v20")
    a(f"v_lshlrev_b32 v20, 5, v19\nv_add_u32 v20, v20, v18\nv_lshlrev_b32 v20, 8, v20\nv_lshl_add_u32 v20, v16, 2, v20\ns_lshl_b32 s{T}, s{S_W}, 6")
    for jp in range(4):
        a(f"s_xor_b32 s{T+1}, s{S_W}, {jp}\ns_lshl_b32 s{T+1}, s{T+1}, 9\ns_add_u32 s{T+1}, s{T+1}, s{T}\nv_add_u32 v{VO+2+2*jp}, s{T+1}, v20\nv_add_u32 v{VO+3+2*jp}, 0x10000, v{VO+2+2*jp}")
    a(f"v_lshlrev_b32 v20, 12, v17\nv_lshl_add_u32 v20, v16, 4, v20\ns_lshl_b32 s{T}, s{H}, 17\ns_lshl_b32 s{T+1}, s{S_W}, 8\ns_add_u32 s{T}, s{T}, s{T+1}\nv_add_u32 v{VO+1}, s{T}, v20")
    def mid():
        a(f"v_mov_b32 v20, 0x4444\nv_mov_b32 v22, 0xeeee\nv_cmp_gt_u32 vcc, 8, v16\nv_cndmask_b32 v{V_IDX}, v22, v20, vcc")
        a(f"v_lshrrev_b32 v20, 3, v16\nv_lshlrev_b32 v20, 1, v20\nv_lshl_add_u32 v20, v18, 2, v20\nv_add_u32 v20, v20, v19\nv_lshlrev_b32 v20, 13, v20\nv_lshl_add_u32 v20, v21, 3, v20")
        a(f"s_lshl_b32 s{T}, s{H}, 6\ns_lshl_b32 s{T+1}, s{S_W}, 16\ns_add_u32 s{T+1}, s{T}, s{T+1}\nv_add_u32 v{V_PST}, s{T+1}, v20")
        a(f"v_and_b32 v20, 3, v16\nv_lshlrev_b32 v20, 4, v20\nv_lshl_add_u32 v20, v19, 3, v20\nv_lshl_add_u32 v20, v18, 2, v20")
        a(f"s_lshl_b32 s{T+1}, s{S_W}, 11\ns_add_u32 s{T}, s{T}, s{T+1}\nv_add_u32 v{V_MST}, s{T}, v20")
        a(f"v_add_u32 v{V_MBR}, {hex(L_MB)}, v23\nv_add_u32 v{V_LW}, s{T+1}, v{V_MBR}")
        a(f"v_lshrrev_b32 v20, 1, v21\nv_and_b32 v22, 1, v16\nv_lshlrev_b32 v22, 4, v22\nv_mov_b32 v25, 0x3f80\nv_lshlrev_b32 v25, v22, v25")
        for d in range(4): a(f"v_cmp_eq_u32 vcc, {d}, v20\nv_cndmask_b32 v{28+d}, 0, v25, vcc")
        a(f"ds_write_b128 v{V_MBR}, v[28:31] offset:{L_SEL-L_MB}")
        a(f"s_mul_i32 s{T}, s{S_W}, {NSP*2048}\nv_add_u32 v{V_WL}, s{T}, v23")
        a(f"v_lshlrev_b32 v20, 5, v16\nv_lshl_add_u32 v20, v18, 4, v20\nv_lshl_add_u32 v20, v19, 3, v20\ns_lshl_b32 s{T}, s{S_W}, 9\ns_add_u32 s{T+1}, s{T}, {hex(L_TQ)}\nv_add_u32 v{V_TW}, s{T+1}, v20")
        a(f"v_lshrrev_b32 v20, 2, v16\nv_lshl_add_u32 v20, v17, 3, v20\nv_lshlrev_b32 v20, 4, v20\nv_and_b32 v22, 1, v16\nv_lshl_add_u32 v20, v22, 3, v20\nv_add_u32 v{V_TR}, {hex(L_TQ)}, v20")
        a(f"s_lshl_b32 s{T}, s{H}, 2\ns_add_u32 s{T}, s{T}, s{S_W}\ns_lshl_b32 s{T+1}, s{T}, 6\ns_add_u32 s{T+1}, s{T+1}, {hex(MBUF+8192)}\nv_mov_b32 v20, s{T+1}\nv_mov_b32 v21, 0x2000")
        a(f"s_lshl_b32 s{T+1}, s{T}, 11\ns_add_u32 s{T+1}, s{T+1}, {hex(VF - 0x40000)}\nv_lshlrev_b32 v{V_PF}, 6, v{LN}\nv_add_u32 v{V_PF}, s{T+1}, v{V_PF}\nv_mov_b32 v{V_PFS}, 0x40000")
        a(f"v_cmp_eq_u32 vcc, 2, v17\nv_cndmask_b32 v{V_PF}, v{V_PF}, v20, vcc\nv_cndmask_b32 v{V_PFS}, v{V_PFS}, v21, vcc")
        a(f"s_lshl_b32 s{T+1}, s{H}, 8\ns_add_u32 s{T+1}, s{T+1}, {hex(KVFLAG)}\nv_mov_b32 v22, s{T+1}\nv_mov_b32 v21, 4\nv_cmp_eq_u32 vcc, 3, v17\nv_cndmask_b32 v{V_PF}, v{V_PF}, v22, vcc\nv_cndmask_b32 v{V_PFS}, v{V_PFS}, v21, vcc")
        a(f"s_mul_i32 s{T}, s{H}, 384\ns_add_u32 s{T}, s{T}, {hex(KMFLAG - 4)}\nv_mov_b32 v{V_FL}, s{T}\nv_mov_b32 v{V_ONE}, 1")
        a(f"s_add_u32 s{S_PB}, s{S_WS}, {hex(PBUF - L_MB)}\ns_addc_u32 s{S_PB+1}, s{S_WS+1}, 0\ns_mov_b32 s{S_RING}, 0xc0000\ns_lshl_b32 s{S_HOFF}, s{H}, 13")
        a(f"s_add_u32 s{S_PL}, s{S_PB}, s{S_HOFF}\ns_addc_u32 s{S_PL+1}, s{S_PB+1}, 0\ns_add_u32 s{S_PL}, s{S_PL}, 0xc0000\ns_addc_u32 s{S_PL+1}, s{S_PL+1}, 0")
        a(f"s_add_u32 s{S_M}, s{S_WS}, {hex(MBUF - L_MB)}\ns_addc_u32 s{S_M+1}, s{S_WS+1}, 0\ns_add_u32 s{S_MS}, s{S_WS}, {hex(MBUF)}\ns_addc_u32 s{S_MS+1}, s{S_WS+1}, 0")
        for pair, base in ((S_KF, KF), (S_VF, VF), (S_KM, KM)):
            a(f"s_add_u32 s{pair}, s{S_WS}, s{S_HOFF}\ns_addc_u32 s{pair+1}, s{S_WS+1}, 0\ns_add_u32 s{pair}, s{pair}, {hex(base - L_MB)}\ns_addc_u32 s{pair+1}, s{pair+1}, 0")
        a(f"s_mov_b32 s{S_C}, {hex(f32bits(SCALE*LOG2E))}\ns_mov_b32 s{S_C+1}, s{S_C}\ns_mov_b32 s{S_ONES}, 0x3f803f80\ns_mov_b32 s{S_ONES+1}, 0x3f803f80\ns_mov_b32 s{S_HALF}, 0x3f003f00\ns_mov_b32 s{S_HALF+1}, 0x3f003f00")
        a(f"s_mov_b32 s{S_EM}, 0x000f000f\ns_mov_b32 s{S_EM+1}, 0x000f000f")
        a("v_mov_b64 v[28:29], -1\nv_mov_b64 v[30:31], -1")
        a(f"v_add_u32 v20, s{S_HOFF}, v{V_LW}")
        for r in range(4):
            a(f"global_store_dwordx4 v20, v[28:31], {sr(S_PB,2)} {st}\nglobal_store_dwordx4 v20, v[28:31], {sr(S_PB,2)} offset:1024 {st}\nv_add_u32 v20, 0x40000, v20")
        a(f"s_lshl_b32 s{T}, s{H}, 14\ns_add_u32 s{T}, s{T}, 8192\nv_add_u32 v20, s{T}, v{V_LW}")
        for r in range(2):
            a(f"global_store_dwordx4 v20, v[28:31], {sr(S_M,2)} {st}\nglobal_store_dwordx4 v20, v[28:31], {sr(S_M,2)} offset:1024 {st}\nv_add_u32 v20, 0x2000, v20")
    HOLD = 48
    def dest(f, m, stg):
        k, b = loc[f]
        return f"v{stg+m}" if k == 'l' else f"{k}{b+m}"
    def flush(f, stg):
        k, b = loc[f]
        if k == 'l':
            a(f"ds_write_b128 v{V_WL}, {vr(stg,4)} offset:{b*2048}\nds_write_b128 v{V_WL}, {vr(stg+4,4)} offset:{b*2048+1024}\ns_waitcnt lgkmcnt(0)")
    chunks = []
    for mat, srd in (('q', S_SRD0), ('k', S_SRD1), ('v', S_SRD2)):
        for half in range(2):
            items = []
            for u in range(half, 8, 2):
                for m in range(8):
                    d = 128 * (m >> 2) + 8 * (8 * (m & 1) + 2 * ((m >> 1) & 1))
                    k0 = 32 * (m >> 2) + 2 * (m & 3)
                    assert d + 256 * half + 2 * (u >> 1) == chain_d(u, k0) and d + 8 + 256 * half + 2 * (u >> 1) == chain_d(u, k0 + 1)
                    hold = lambda f: HOLD + 8 * loc[f][1] if loc[f][0] == 'l' else 0
                    items.append((VO + 2 + 2 * (u >> 1), d, d + 8, [dest((mat, t, u), m, hold((mat, t, u))) for t in range(2)], None))
            chunks.append((srd, 256 * half, items))
    def early():
        a(f"v_mov_b32 v122, {D_FINIT*4}\nglobal_load_dword v123, v122, {sr(S_DBG,2)} sc1")
    def lst(i):
        if opts.get('pro'): a(f"s_memrealtime s[32:33]\ns_waitcnt lgkmcnt(0)\ns_mov_b32 s{88+i}, s32")
    hk = {i: (lambda i=i: lst(i)) for i in range(6)}
    hk[3] = lambda: (early(), lst(3))
    def h0():
        for i in range(8): a(f"v_lshl_or_b32 v{96+i}, v{97+2*i}, 16, v{96+2*i}")
        a(f"ds_write_b128 v{V_LW}, v[96:99]\nds_write_b128 v{V_LW}, v[100:103] offset:1024"); lst(0)
    def h2():
        a(f"s_cmp_lg_u32 s{S_W}, 0\ns_cbranch_scc1 L_noci\nv_mov_b32 v16, {D_CINIT*4}\ns_mov_b64 exec, 1\nglobal_atomic_add v16, v{V_ONE}, {sr(S_DBG,2)} sc1\ns_mov_b64 exec, -1\nL_noci:"); lst(2)
    hk[0] = h0; hk[2] = h2
    wfl = opts.get('wfl', 'nt')
    load_w_lds(a, chunks, f"v{VO}", None, 16, hooks=hk, mid=mid, fl=wfl)
    a("s_barrier")
    for f, (k, b) in loc.items():
        if k == 'l' and f[0] != 'o': flush(f, HOLD + 8 * b)
    a(f"v_cmp_ne_u32 vcc, 1, v123\ns_cbranch_vccz L_fi_ok")
    dbg_wait(a, D_FINIT, 1, "v122", "v123")
    a("L_fi_ok:")
    lst(6)
    a(f"s_lshl_b32 s{T}, s{H}, 8\ns_add_u32 s{T}, s{T}, {hex(KVFLAG)}\nv_mov_b32 v122, s{T}\nglobal_load_dword v123, v122, {sr(S_WS,2)} sc1\ns_mov_b32 s{S_S}, 0")
    def first_dma():
        a(f"global_load_dwordx4 {vr(KXS,4)}, v{V_LW}, {sr(S_KF,2)} sc1\nglobal_load_dwordx4 {vr(KXS+4,4)}, v{V_LW}, {sr(S_KF,2)} offset:1024 sc1")
        a(f"global_load_dword v{V_PFD}, v{V_PF}, {sr(S_WS,2)} sc1\nv_add_u32 v{V_PF}, v{V_PF}, v{V_PFS}")
    def try_dma():
        a(f"s_mov_b32 exec_lo, 0\nglobal_load_dword v125, v{V_PF}, {sr(S_WS,2)} sc1\ns_mov_b32 exec_lo, -1\nv_add_u32 v{V_PF}, v{V_PF}, v{V_PFS}")
        a(f"v_mov_b32 v124, 0x01010101\nv_cmp_ne_u32 vcc, v124, v123\ns_cbranch_vccnz L_nodma0")
        first_dma()
        a(f"s_mov_b32 s{S_S}, 1\nL_nodma0:")
        a(f"v_mov_b32 v120, {D_CINIT*4}\nglobal_load_dword v121, v120, {sr(S_DBG,2)} sc1")
    STG = 88
    items = []
    for x in range(4):
        for mm in range(4):
            e = 32 * x + 16 * (mm >> 1) + 2 * (mm & 1)
            dests = []
            for t8 in range(8):
                j, tp = t8 >> 1, t8 & 1
                m = 4 * (mm >> 1) + 2 * (mm & 1) + tp
                dests.append(dest(('o', j, x), m, STG + 8 * (j - 1) if j >= 1 else 0))
            post = None
            if mm == 3: post = (lambda x=x: (flush(('o', 1, x), STG), flush(('o', 2, x), STG + 8), flush(('o', 3, x), STG + 16)))
            if x == 1 and mm == 2: post = try_dma
            items.append((S_SRD3, f"v{VO+1}", e * 1024, (e + 1) * 1024, dests, post))
    load_pairs(a, items, 16, 8, width=4, fl=opts.get('ofl', ''))
    rt_stamp(a, opts, 1, 96)
    def adv(pair, n): return [f"s_add_u32 s{pair}, s{pair}, {hex(n)}", f"s_addc_u32 s{pair+1}, s{pair+1}, 0"]
    a(f"ds_read_b128 {vr(MEM,4)}, v{V_LW}\nds_read_b128 {vr(MEM+4,4)}, v{V_LW} offset:1024")
    a(f"s_cmp_eq_u32 s{S_S}, 1\ns_cbranch_scc1 L_dma0_done")
    wait_flag(a, "v122", S_WS, "v124", "v123", sleep=1)
    first_dma()
    a("L_dma0_done:")
    lst(7)
    a(f"v_cmp_ne_u32 vcc, 32, v121\ns_cbranch_vccz L_ci_ok")
    dbg_wait(a, D_CINIT, 32, "v24", "v25")
    a("L_ci_ok:")
    for x in adv(S_KF, 0x40000): a(x)
    a(f"s_mov_b32 s{S_S}, 0\ns_waitcnt vmcnt(0)")
    a(f"ds_write_b128 v{V_LW}, {vr(KXS,4)} offset:{L_KX-L_MB}\nds_write_b128 v{V_LW}, {vr(KXS+4,4)} offset:{L_KX-L_MB+1024}")
    rt_stamp(a, opts, 2, 96)
    if prof:
        for i in range(8): a(f"s_mov_b32 s{88+i}, 0")
    for w in range(1, 4): a(f"s_cmp_eq_u32 s{S_W}, {w}\ns_cbranch_scc1 L_entry{w}")
    for w in range(4): gen_loop(a, opts, loc, w)
    a("L_chain_fin:")
    a(f"s_waitcnt vmcnt(0)\ns_barrier\ns_cmp_lg_u32 s{S_W}, 0\ns_cbranch_scc1 L_fin2\ns_mov_b64 exec, 1\nglobal_store_dword v{V_FL}, v{V_ONE}, {sr(S_WS,2)} sc1\ns_mov_b64 exec, -1\nL_fin2:")
    rt_stamp(a, opts, 3, 96)
    if opts.get('prof'):
        a(f"s_lshl_b32 s34, s96, 8\ns_lshl_b32 s35, s{S_W}, 6\ns_add_u32 s34, s34, s35\ns_add_u32 s34, s34, {hex(PROF + 32)}\nv_mov_b32 v16, s34")
        for i in range(8): a(f"v_mov_b32 v{20+i}, s{88+i}")
        a(f"global_store_dwordx4 v16, v[20:23], {sr(S_WS,2)}\nglobal_store_dwordx4 v16, v[24:27], {sr(S_WS,2)} offset:16")
        a(f"v_mov_b32 v17, s{S_SPIN}\nglobal_store_dword v16, v17, {sr(S_WS,2)} offset:-4")
    a("s_endpgm")

def gen_loop(a, opts, loc, w):
    T = S_T; H = S_RANK
    st = opts.get('chain_st', '')
    prof = opts.get('cyc')
    nohop = opts.get('nohop')
    def P(name, dflt):
        v = opts.get(name, dflt)
        return v[w] if isinstance(v, (tuple, list)) else v
    smap = opts.get('smap', {1: 1, 2: 2, 3: 3, 4: 4, 5: 5, 6: 6, 7: 7})
    def stamp(i):
        if prof and i in smap: a(f"{'s_memrealtime' if opts.get('abs') else 's_memtime'} s[{48+2*smap[i]}:{49+2*smap[i]}]")
    lg = Cnt(a, "lgkmcnt", 15)
    where = {}
    def wread(f, reg):
        k, b = loc[f]; assert k == 'l'
        where[f] = reg
        return [(f"ds_read_b128 {vr(reg,4)}, v{V_WL} offset:{b*2048}", ('w', f)), (f"ds_read_b128 {vr(reg+4,4)}, v{V_WL} offset:{b*2048+1024}", ('w', f))]
    def emit(x):
        if callable(x): x()
        elif isinstance(x, tuple): a(x[0]); lg.issue(x[1])
        else: a(x)
    def smf(acc, A, f):
        k, b = loc[f]
        B = vr(where[f], 8) if k == 'l' else (ar if k == 'a' else vr)(b, 8)
        a(f"v_smfmac_f32_16x16x64_bf16 {vr(acc,4)}, {vr(A,4)}, {B}, v{V_IDX}")
    QL = [('q', 0, 0), ('q', 1, 0), ('q', 0, 1), ('q', 1, 1)]
    KL = [('k', 0, 2), ('k', 1, 2), ('k', 0, 3), ('k', 1, 3)]
    def zero2(b, n): return [f"v_mov_b64 {vr(b+i,2)}, 0" for i in range(0, n, 2)]
    def dma(lbase, pair):
        return [f"s_mov_b32 m0, {hex(lbase + 2048*w)}", f"global_load_lds_dwordx4 v{V_LW}, {sr(pair,2)} sc1", f"global_load_lds_dwordx4 v{V_LW}, {sr(pair,2)} offset:1024 sc1"]
    def adv(pair, n): return [f"s_add_u32 s{pair}, s{pair}, {hex(n)}\ns_addc_u32 s{pair+1}, s{pair+1}, 0"]
    def warm(n):
        for i in range(n): a(f"v_mov_b32 v{X0}, 0\ns_nop 2")
    def kind(x):
        if callable(x): return 1
        s_ = x[0] if isinstance(x, tuple) else x
        return 0 if s_.startswith(('ds_', 'global_')) else (2 if s_.startswith('v_') else 1)
    def run(ms, fill):
        for tg in ms[0][1]: lg.wait(tg)
        for i, (fn, _) in enumerate(ms):
            fn()
            items = fill.get(i, [])
            for x in fill.get(('pre', i), []): emit(x)
            for k in (0, 1):
                for x in items:
                    if kind(x) == k: emit(x)
            if i + 1 < len(ms):
                for tg in ms[i + 1][1]: lg.wait(tg)
            for x in items:
                if kind(x) == 2: emit(x)
            for x in fill.get(('post', i), []): emit(x)
    OWN = MEM
    ld2 = f"global_load_dwordx4 {vr(OWN,4)}, v{V_LW}, {sr(S_M,2)} sc1\nglobal_load_dwordx4 {vr(OWN+4,4)}, v{V_LW}, {sr(S_M,2)} offset:1024 sc1"
    chk2 = f"v_max3_u32 v{X0}, v{OWN}, v{OWN+1}, v{OWN+2}\nv_max3_u32 v{X1}, v{OWN+3}, v{OWN+4}, v{OWN+5}\nv_max3_u32 v{X0}, v{X0}, v{OWN+6}, v{OWN+7}\nv_max_u32 v{X0}, v{X0}, v{X1}\nv_cmp_eq_u32 vcc, -1, v{X0}"
    mw = [(f"ds_write_b128 v{V_LW}, {vr(OWN,4)}", 'mw'), (f"ds_write_b128 v{V_LW}, {vr(OWN+4,4)} offset:1024", 'mw')]
    ring = [f"s_mov_b64 {sr(S_PR,2)}, {sr(S_PL,2)}\ns_add_u32 s{S_RING}, s{S_RING}, 0x40000", f"s_and_b32 s{S_RING}, s{S_RING}, 0xc0000\ns_add_u32 s{T+2}, s{S_RING}, s{S_HOFF}",
            f"s_add_u32 s{S_PL}, s{S_PB}, s{T+2}\ns_addc_u32 s{S_PL+1}, s{S_PB+1}, 0", f"s_add_u32 s{T+2}, s{S_RING}, {hex(L_MB + 4096)}", f"s_add_u32 s{S_P}, s{S_PB}, s{T+2}\ns_addc_u32 s{S_P+1}, s{S_PB+1}, 0"]
    vxl = [f"global_load_dwordx4 {vr(VX+4*i,4)}, v{V_LW}, {sr(S_VF,2)} offset:{1024*i} sc1" for i in range(2)]
    kxl = [f"global_load_dwordx4 {vr(KXS+4*i,4)}, v{V_LW}, {sr(S_KF,2)} offset:{1024*i} sc1" for i in range(2)]
    kxw = [(f"ds_write_b128 v{V_LW}, {vr(KXS+4*i,4)} offset:{L_KX-L_MB+1024*i}", 'kxw') for i in range(2)]
    a(f"L_entry{w}:")
    for i, f in enumerate(QL):
        for x in wread(f, WIN + 8 * i): emit(x)
    for x in zero2(AQ, 24): a(x)
    a("s_waitcnt vmcnt(0)"); lg.waitall()
    a(f".p2align 6\nL_step{w}:")
    if prof: a(("s_memrealtime" if opts.get('abs') else "s_memtime") + " s[32:33]")
    RA = QOP; KMOP = MEM; PUB = AK + 4
    fill = {}
    drop = opts.get('drop', ())
    def F(g, *xs):
        for x in xs:
            s_ = x[0] if isinstance(x, tuple) else x
            if not callable(x) and any(d in s_ for d in drop): continue
            fill.setdefault(g, []).append(x)
    def S(acc, mat, t, u):
        f = (mat, t, u)
        tags = ([('m', u)] if u >= 2 else []) + ([('w', f)] if loc[f][0] == 'l' else [])
        return (lambda: smf(acc + 4 * t, MEM + 4 * u, f), tags)
    def B(acc, mat, us): return [S(acc, mat, t, u) for u in us for t in range(2)]
    def post_T(acc):
        s_ = [f"v_permlane32_swap_b32 v{acc+r}, v{acc+4+r}" for r in range(4)]
        s_ += [f"v_add_f32 v{acc+r}, v{acc+r}, v{acc+4+r}" for r in range(4)]
        s_ += [f"v_cvt_pk_bf16_f32 v{acc+4}, v{acc}, v{acc+1}", f"v_cvt_pk_bf16_f32 v{acc+5}, v{acc+2}, v{acc+3}"]
        return s_
    def tr(dst, off, tag): return (f"ds_read_b64_tr_b16 {vr(dst,2)}, v{V_TR} offset:{off}", tag)
    def mrd(u): return (f"ds_read_b128 {vr(MEM+4*u,4)}, v{V_MBR} offset:{2048*((u>>1)^w)+1024*(u&1)}", ('m', u))
    def accum():
        if prof and opts.get('abs'):
            a(f"s_cmp_lg_u32 s{S_S}, {opts['abs']}\ns_cbranch_scc1 L_noacc{w}")
            for i in range(7): a(f"s_mov_b32 s{88+i}, s{50+2*i}")
            a(f"s_mov_b32 s95, s32\nL_noacc{w}:\ns_mov_b32 s48, s32")
        elif prof:
            a(f"s_cmp_lt_u32 s{S_S}, {prof}\ns_cbranch_scc1 L_noacc{w}")
            for i in range(7): a(f"s_sub_u32 s34, s{50+2*i}, s{48+2*i}\ns_add_u32 s{88+i}, s{88+i}, s34")
            a(f"s_sub_u32 s34, s32, s62\ns_add_u32 s95, s95, s34")
            a(f"L_noacc{w}:\ns_mov_b32 s48, s32")
    lg.reset()
    off = 0
    ms = B(AQ, 'q', (0, 1)) + B(AK, 'k', (0, 1)) + B(AV, 'v', (0, 1))
    ms += B(AQ, 'q', range(2, 8)) + B(AK, 'k', range(2, 8)) + B(AV, 'v', range(2, 8))
    def XS(ks, kt): return (lambda: a(f"v_mfma_f32_16x16x32_bf16 {vr(AQ+4*kt,4)}, {vr(WIN+8*ks+4*kt,4)}, {vr(QOP+4*ks,4)}, " + ("0" if ks == 0 else vr(AQ + 4 * kt, 4))), [('qop', ks)])
    ms += [XS(ks, kt) for ks in range(4) for kt in range(2)]
    def MS(ks): return (lambda: a(f"v_mfma_f32_16x16x32_bf16 {vr(AK,4)}, {vr(KMOP+4*ks,4)}, {vr(QOP+4*ks,4)}, " + ("0" if ks == 0 else vr(AK, 4))), [('kmop', ks)])
    ms += [MS(ks) for ks in range(4)]
    F(0, mw[0]); F(1, mw[1])
    F(2, f"v_readlane_b32 s{T+1}, v{V_PFD}, 48"); F(3, f"v_mov_b64 {vr(RA,2)}, -1"); F(4, f"v_mov_b64 {vr(RA+2,2)}, -1")
    F(4, f"s_cmp_eq_u32 s{T+1}, 0x01010101\ns_cbranch_scc0 L_flag_slow{w}\nL_flag_ok{w}:")
    B0 = opts.get('b0', 7)
    F(('pre', B0), lambda: (lg.waitall() if prof else lg.wait('mw'), accum(), a("s_barrier"), stamp(1)))
    for u in range(2, 8): F(B0 + max(0, u - 3), mrd(u))
    F(('pre', 11), "s_waitcnt vmcnt(0)"); F(11, vxl[0])
    sw = w if opts.get('stag', 1) else 0
    kf = []
    for i, f in enumerate(KL): kf += wread(f, WIN + 8 * i)
    F(12, vxl[1])
    for g, x in zip((2, 3, 4, 5, 13, 14, 15, 16), kf): F(g, x)
    F(17 + (sw & 1), kxl[0]); F(19 + (sw & 1), kxl[1])
    rearm = [f"global_store_dwordx4 v{V_LW}, {vr(RA,4)}, {sr(S_PR,2)} offset:{1024*jj} {st}" for jj in range(2)]
    F(22, ring[0], ring[1]); F(23, ring[2], ring[3]); F(24, ring[4])
    kxr = [(f"ds_read_b128 {vr(WIN+8*ks+4*kt,4)}, v{V_MBR} offset:{L_KX-L_MB+(kt*4+ks)*1024}", 'kx') for ks in range(4) for kt in range(2)]
    vslots = [26 + sw, 30 + sw]
    kg = [g for g in range(25, 35) if g not in vslots]
    for g, x in zip(kg, kxr): F(g, x)
    F(vslots[0], rearm[0]); F(vslots[1], rearm[1])
    for i, x in enumerate(post_T(AQ)): F(25 + i, x)
    F(35, (f"ds_write_b64 v{V_TW}, {vr(AQ+4,2)}", 'tq'))
    F(36, f"global_load_dword v{V_PFD}, v{V_PF}, {sr(S_WS,2)} sc1"); F(37, *adv(S_VF, 0x40000)); F(38, *adv(S_M, 8192)); F(39, *adv(S_MS, 8192))
    pk = post_T(AK)
    for g, x in zip(opts.get('kp', [37, 38, 39, 40, 41, 42, 43, 44, 45, 45]), pk): F(g, x)
    TKW = opts.get('tkw', 46); B1 = opts.get('b1', 41); B2 = opts.get('b2', 52)
    F(TKW, (f"ds_write_b64 v{V_TW}, {vr(AK+4,2)} offset:2048", 'tk'))
    F(('pre', B1), lambda: (lg.waitall(), a("s_barrier"), stamp(2)))
    qg = opts.get('qg', [41, 41, 42, 42, 43, 43, 44, 44])
    for i in range(8): F(qg[i], tr(QOP + 2 * i, 512 * (i >> 1) + 64 * (i & 1), ('qop', i >> 1)))
    F(48, *adv(S_KF, 0x40000)); F(47, f"v_add_u32 v{V_PF}, v{V_PF}, v{V_PFS}")
    if w == opts.get('flw', 0):
        F(49, f"s_mov_b64 exec, 1\nglobal_store_dword v{V_FL}, v{V_ONE}, {sr(S_WS,2)} sc1\ns_mov_b64 exec, -1")
    F(51, f"v_add_u32 v{V_FL}, 4, v{V_FL}")
    if w == 1 and opts.get('steps'):
        F(44, "s_memrealtime s[32:33]")
        F(('post', 53), f"s_lshl_b32 s34, s{H}, 8\ns_lshl_b32 s35, s{S_S}, 2\ns_add_u32 s34, s34, s35\ns_add_u32 s34, s34, {hex(PROF + 0x20000)}\nv_mov_b32 v{X0}, s34\nv_mov_b32 v{X1}, s32\ns_mov_b64 exec, 1\nglobal_store_dword v{X0}, v{X1}, {sr(S_WS,2)}\ns_mov_b64 exec, -1")
    F(('pre', B2), lambda: (lg.waitall(), a("s_barrier"), stamp(3)))
    for ks in range(4):
        F(B2 + (ks + 1) // 2, tr(KMOP + 4 * ks, 2048 + 512 * ks, ('kmop', ks)), tr(KMOP + 4 * ks + 2, 2048 + 512 * ks + 64, ('kmop', ks)))
    of2 = []; of3 = {}
    for x in range(4): of2 += wread(('o', 2, x), WIN + 8 * x)
    o3order = [w] + [x for x in range(4) if x != w]
    of3 = []
    for x, reg in zip(o3order, (MEM + 16, MEM + 24, MEM, MEM + 8)): of3 += wread(('o', 3, x), reg)
    for g in [g for g in (55, 56, 57, 58, 59) if g != 56 + w]: F(g, of3.pop(0))
    F(49, f"v_cvt_pk_bf16_f32 v{AV}, v{AV}, v{AV+1}", f"v_cvt_pk_bf16_f32 v{AV+1}, v{AV+2}, v{AV+3}")
    F(50, f"v_cvt_pk_bf16_f32 v{AV+2}, v{AV+4}, v{AV+5}", f"v_cvt_pk_bf16_f32 v{AV+3}, v{AV+6}, v{AV+7}")
    F(P('vmg', 51), f"global_store_dwordx4 v{V_LW}, {vr(AV,4)}, {sr(S_KM,2)} offset:1024 sc1")
    F(53, f"v_mov_b64 {vr(AV+4,2)}, {sr(S_ONES,2)}"); F(54, f"v_mov_b64 {vr(AV+6,2)}, {sr(S_ONES,2)}"); F(55, f"v_mov_b64 {vr(AK+6,2)}, {sr(S_HALF,2)}")
    F(56, f"v_max3_f32 v{MX}, v{AQ}, v{AQ+1}, v{AQ+2}"); F(57, f"v_max3_f32 v{MX}, v{MX}, v{AQ+3}, v{AQ+4}"); F(58, f"v_max3_f32 v{MX}, v{MX}, v{AQ+5}, v{AQ+6}"); F(59, f"v_max_f32 v{MX}, v{MX}, v{AQ+7}")
    F(56 + w, f"global_store_dwordx4 v{V_LW}, {vr(KMOP+4*w,4)}, {sr(S_KM,2)} sc1")
    F(59, f"s_cmp_eq_u32 s{S_S}, 63\ns_cbranch_scc1 L_chain_fin")
    for g in range(4, 60): F(('pre', g), lambda g=g: stamp(100 + g))
    run(ms, fill)
    stamp(200)
    T0 = X0
    OA, LA, HF_, ONES = QOP, QOP + 8, AK + 6, AV + 4
    a(f"v_max3_f32 v{MX}, v{MX}, v{AK}, v{AK+1}\nv_max3_f32 v{MX}, v{MX}, v{AK+2}, v{AK+3}\nv_mov_b32 v{T0}, v{MX}")
    for y in adv(S_KM, 0x40000): a(y)
    a(f"v_permlane16_swap_b32 v{MX}, v{T0}\nv_max_f32 v{MX}, v{MX}, v{T0}\nv_mov_b32 v{T0}, v{MX}\ns_add_u32 s{S_S}, s{S_S}, 1")
    a(f"v_permlane32_swap_b32 v{MX}, v{T0}\nv_max_f32 v{MX}, v{MX}, v{T0}\nv_mul_f32 v{T0}, s{S_C}, v{MX}")
    pf = lambda r: f"v_pk_fma_f32 {vr(r,2)}, {vr(r,2)}, {sr(S_C,2)}, {vr(T0,2)} op_sel_hi:[1,1,0] neg_lo:[0,0,1] neg_hi:[0,0,1]"
    stamp(201)
    for r in (AQ, AQ + 2, AQ + 4, AQ + 6, AK, AK + 2): a(pf(r))
    for r in range(8): a(f"v_exp_f32 v{AQ+r}, v{AQ+r}")
    for r in range(4): a(f"v_cvt_pk_bf16_f32 v{AQ+r}, v{AQ+2*r}, v{AQ+2*r+1}")
    a(f"v_exp_f32 v{AK}, v{AK}\nv_exp_f32 v{AK+1}, v{AK+1}")
    stamp(202)
    a(f"v_mfma_f32_16x16x32_bf16 {vr(LA,4)}, {vr(ONES,4)}, {vr(AQ,4)}, 0")
    a(f"s_waitcnt vmcnt({7 + (1 if w == opts.get('flw', 0) else 0)})")
    a(f"v_exp_f32 v{AK+2}, v{AK+2}")
    a(f"v_mfma_f32_16x16x32_bf16 {vr(OA,4)}, {vr(VX,4)}, {vr(AQ,4)}, 0")
    a(f"v_exp_f32 v{AK+3}, v{AK+3}")
    a(f"v_mfma_f32_16x16x32_bf16 {vr(OA+4,4)}, {vr(VX+4,4)}, {vr(AQ,4)}, 0")
    a(f"v_cvt_pk_bf16_f32 v{AK}, v{AK}, v{AK+1}\nv_cvt_pk_bf16_f32 v{AK+1}, v{AK+2}, v{AK+3}")
    WACC = AK
    a(f"v_mov_b64 {vr(WACC+12,2)}, 0\nv_mov_b64 {vr(WACC+14,2)}, 0")
    a(f"v_mfma_f32_16x16x16_bf16 {vr(LA,4)}, {vr(HF_,2)}, {vr(AK,2)}, {vr(LA,4)}")
    emit(of2[2 * w]); a(f"v_mov_b64 {vr(WACC+2,2)}, 0")
    a(f"v_mfma_f32_16x16x16_bf16 {vr(OA,4)}, {vr(AV,2)}, {vr(AK,2)}, {vr(OA,4)}")
    emit(of2[2 * w + 1]); a(f"v_mov_b64 {vr(WACC+4,2)}, 0")
    of2 = [x for i, x in enumerate(of2) if i // 2 != w]
    a(f"v_mfma_f32_16x16x16_bf16 {vr(OA+4,4)}, {vr(AV+2,2)}, {vr(AK,2)}, {vr(OA+4,4)}")
    emit(of2.pop(0))
    stamp(203)
    a(f"v_rcp_f32 v{T0}, v{LA}")
    for x in zero2(WACC + 6, 2) + zero2(WACC, 2) + zero2(WACC + 8, 4): a(x)
    for r in range(0, 8, 2): a(f"v_pk_mul_f32 {vr(OA+r,2)}, {vr(OA+r,2)}, {vr(T0,2)} op_sel_hi:[1,0]")
    for r in range(4): a(f"v_cvt_pk_bf16_f32 v{AQ+r}, v{OA+r}, v{OA+4+r}")
    emit((f"ds_write_b128 v{V_LW}, {vr(AQ,4)}", 'ow'))
    stamp(204)
    OOP = QOP
    off = 0
    pst = lambda j: f"global_store_dwordx2 v{V_PST}, {vr(WACC+4*j,2)}, {sr(S_P,2)} offset:{2048*j-4096} {st}"
    def pcv(j):
        b = WACC + 4 * j
        return [f"v_cvt_pk_bf16_f32 v{b}, v{b}, v{b+1}", f"v_cvt_pk_bf16_f32 v{b+1}, v{b+2}, v{b+3}"]
    def W(j, x):
        f = ('o', j, x)
        tags = ([('oop', x)] if x != w else []) + ([('w', f)] if loc[f][0] == 'l' else [])
        return (lambda: smf(WACC + 4 * j, AQ if x == w else OOP + 4 * x, f), tags)
    oth = [x for x in range(4) if x != w]
    ms = [W(j, w) for j in range(4)] + [W(j, x) for j in range(4) for x in oth]
    fill = {}
    B3 = opts.get('b3', 2)
    F(('pre', B3), lambda: (lg.wait('ow'), a("s_barrier"), stamp(4)))
    for x in oth: F(B3, (f"ds_read_b128 {vr(OOP+4*x,4)}, v{V_MBR} offset:{2048*x}", ('oop', x)))
    o13 = wread(('o', 1, 3), VX)
    if w == 3:
        for x in o13: emit(x)
        ms = [ms[0], ms[2], ms[3], ms[1]] + ms[4:]
        rest = of2 + of3
        for g in (B3, B3, 4, 5, 6, 7, 8, 10, 11): F(g, rest.pop(0))
    else:
        rest = o13 + of2 + of3
        for g in (0, 1, B3, B3, 4, 5, 6, 7, 8, 10, 11): F(g, rest.pop(0))
    assert not rest, rest
    SEL = VX
    F(8, *pcv(0)); F(9, pst(0)); F(11, *pcv(1)); F(12, pst(1)); F(14, *pcv(2)); F(15, pst(2))
    qfr = []
    for i, f in enumerate(QL): qfr += wread(f, WIN + 8 * i)
    F(13, qfr.pop(0)); F(14, qfr.pop(0)); F(15, qfr.pop(0), qfr.pop(0))
    for g in range(16): F(('pre', g), lambda g=g: stamp(300 + g))
    run(ms, fill)
    for x in pcv(3): a(x)
    a(pst(3))
    for x in qfr: emit(x)
    emit((f"ds_read_b128 {vr(SEL,4)}, v{V_MBR} offset:{L_SEL-L_MB}", 'sel'))
    stamp(5)
    PB = QOP
    R = VX + 4
    K = P('k1', 2)
    ldp = f"global_load_dwordx4 {vr(PB,4)}, v{V_LW}, {sr(S_PL,2)} sc1\nglobal_load_dwordx4 {vr(PB+4,4)}, v{V_LW}, {sr(S_PL,2)} offset:1024 sc1"
    zs = zero2(AQ, 24)
    def delay(n):
        for i in range(n):
            if len(zs) >= 4:
                for k in range(4): a(zs.pop(0))
            else: warm(1)
    delay(P('d1', (7, 10, 13, 16)))
    for i in range(K):
        a(ldp)
        if i < K - 1: delay(P('g1', 9))
    lg.waitall()
    a(f"s_waitcnt vmcnt({9 + 2 * K + (1 if w == opts.get('flw', 0) else 0)})")
    for x in kxw: emit(x)
    while zs: a(zs.pop(0))
    delay(P('w1', 1))
    chk1 = f"v_max3_u32 v{X0}, v{PB}, v{PB+1}, v{PB+2}\nv_max3_u32 v{X1}, v{PB+3}, v{PB+4}, v{PB+5}\nv_max3_u32 v{X0}, v{X0}, v{PB+6}, v{PB+7}\nv_max_u32 v{X0}, v{X0}, v{X1}\nv_cmp_eq_u32 vcc, -1, v{X0}"
    red = f"v_mfma_f32_16x16x32_bf16 {vr(R,4)}, {vr(PB,4)}, {vr(SEL,4)}, 0\nv_mfma_f32_16x16x32_bf16 {vr(R,4)}, {vr(PB+4,4)}, {vr(SEL,4)}, {vr(R,4)}"
    def retry_loop(lab, chk, ld, ok, unroll=3, every=1):
        a(f"{lab}:")
        for i in range(unroll):
            if i % every == 0: a("s_mov_b64 exec, vcc\n" + ld + "\ns_mov_b64 exec, -1")
            a(chk + f"\ns_cbranch_vccz {ok}")
        a("s_waitcnt vmcnt(32)")
        spin_check(a)
        a(f"s_branch {lab}")
    a(f"s_waitcnt vmcnt({2*K-2})")
    a(chk1 + "\n" + ("s_nop 0" if nohop else f"s_cbranch_vccnz L_hop1_{w}") + f"\nL_hop1_ok{w}:\n" + red)
    stamp(6)
    a(f"v_permlane32_swap_b32 v{R}, v{R+1}\nv_permlane32_swap_b32 v{R+2}, v{R+3}\nv_add_f32 v{R}, v{R}, v{R+1}\nv_add_f32 v{R+2}, v{R+2}, v{R+3}")
    a(f"v_permlane16_swap_b32 v{R}, v{R+2}\nv_add_f32 v{R}, v{R}, v{R+2}")
    a(f"v_mov_b32_dpp v{R+1}, v{R} row_shl:4 row_mask:0xf bank_mask:0xf")
    a(f"v_cvt_pk_bf16_f32 v{R}, v{R}, v{R+1}\ns_mov_b64 exec, {sr(S_EM,2)}\nv_min_u32 v{R}, 0xfffffffe, v{R}")
    a(f"global_store_dword v{V_MST}, v{R}, {sr(S_MS,2)} {st}\ns_mov_b64 exec, -1")
    stamp(7)
    warm(P('d2', 12))
    n2 = P('k2', 2)
    for i in range(n2):
        a(ld2)
        if i < n2 - 1: warm(P('g2', 9))
    warm(P('w2', 3))
    lg.waitall()
    a(f"s_waitcnt vmcnt({2*n2-2})\n" + chk2 + "\n" + (f"s_branch L_step{w}" if nohop else f"s_cbranch_vccz L_step{w}"))
    retry_loop(f"L_hop2_{w}", chk2, ld2, f"L_step{w}", 4, P('ev', 2))
    retry_loop(f"L_hop1_{w}", chk1, ldp, f"L_hop1_ok{w}", 4, P('ev', 2))
    a(f"L_flag_slow{w}:")
    a(f"s_cmp_ge_u32 s{S_S}, 63\ns_cbranch_scc1 L_flag_ok{w}")
    a(f"s_lshl_b32 s{T}, s{H}, 6\ns_add_u32 s{T}, s{T}, s{S_S}\ns_lshl_b32 s{T}, s{T}, 2\ns_add_u32 s{T}, s{T}, {hex(KVFLAG+4)}\nv_mov_b32 v{X0}, s{T}\nv_mov_b32 v{X1}, 0x01010101")
    wait_flag(a, f"v{X0}", S_WS, f"v{X1}", f"v{V_PFD}", sleep=1)
    a(f"s_branch L_flag_ok{w}")
```

```python
from common import *

LOG2E = 1.4426950408889634
SCALE = 128 ** -0.5

def mfma(a, d, A, B, c): a(f"v_mfma_f32_16x16x32_bf16 {d}, {A}, {B}, {c}")
def mfma16(a, d, A, B, c): a(f"v_mfma_f32_16x16x16_bf16 {d}, {A}, {B}, {c}")

S_H, S_P, S_SEG = 64, 65, 66
S_B0 = 68
S_B1 = 70
S_B2 = 72
S_B3 = 74
S_XI, S_TT, S_CG, S_NE, S_NF, S_IF, S_HE = 76, 77, 78, 79, 80, 81, 82
S_MASK = 84
S_C1, S_C2 = 92, 93

def base_ws(a, pair, soff, const=0):
    a(f"s_add_u32 s{pair}, s{S_WS}, s{soff}\ns_addc_u32 s{pair+1}, s{S_WS+1}, 0")
    if const: a(f"s_add_u32 s{pair}, s{pair}, {hex(const)}\ns_addc_u32 s{pair+1}, s{pair+1}, 0")

def big_off(k):
    return f"v{8 + k // 4}", (k % 4) * 1024

def gl(a, dst, k, pair, flags=""):
    v, o = big_off(k)
    a(f"global_load_dwordx4 {vr(dst,4)}, {v}, {sr(pair,2)} offset:{o} {flags}")
def gs(a, src, k, pair, flags="sc1"):
    v, o = big_off(k)
    a(f"global_store_dwordx4 {v}, {vr(src,4)}, {sr(pair,2)} offset:{o} {flags}")

def gen_worker(a, opts):
    T = S_T
    a(f"s_sub_u32 s{S_WID}, s96, 32")
    a("v_and_b32 v1, 15, v0\nv_lshrrev_b32 v2, 4, v0\nv_lshlrev_b32 v8, 4, v0")
    for k in range(1, 8): a(f"v_add_u32 v{8+k}, {4096*k}, v8")
    if opts.get('wdelay'):
        a(f"s_mov_b32 s{T}, {opts['wdelay']}\nL_wdl:\ns_sleep 16\ns_sub_u32 s{T}, s{T}, 1\ns_cmp_lg_u32 s{T}, 0\ns_cbranch_scc1 L_wdl")
    a(f"s_mul_i32 s{S_H}, s{S_WID}, 9363\ns_lshr_b32 s{S_H}, s{S_H}, 16\ns_mul_i32 s{T}, s{S_H}, 7\ns_sub_u32 s{S_P}, s{S_WID}, s{T}")
    a(f"s_cmp_lg_u32 s{S_WID}, 2\ns_cbranch_scc1 L_nofi")
    a(f"s_lshl_b32 s{T}, s{S_W}, 10\ns_add_u32 s{T}, s{T}, {hex(FLAGS)}\nv_add_u32 v3, s{T}, v8\nv_mov_b64 v[16:17], 0\nv_mov_b64 v[18:19], 0")
    for k in range(FLAGS_SIZE // 4096): a(f"global_store_dwordx4 v3, v[16:19], {sr(S_WS,2)} sc1\nv_add_u32 v3, 4096, v3")
    dbg_add_wg(a, D_FINIT, "v3", "v4")
    a("L_nofi:")
    a(f"s_cmp_lt_u32 s{S_P}, 3\ns_cbranch_scc1 L_noln")
    a(f"s_sub_u32 s{S_SEG}, s{S_P}, 3\ns_lshl_b32 s{S_SEG}, s{S_SEG}, 5\ns_add_u32 s{S_SEG}, s{S_SEG}, s{S_H}")
    gen_ln(a, S_SEG, 140000)
    dbg_add_wg(a, D_LN, "v3", "v4")
    a("L_noln:")
    xfl = opts.get('xfl', 'sc1')
    set_srd(a, S_SRD0, S_WQ, 512 * 8192); set_srd(a, S_SRD1, S_WK, 512 * 8192); set_srd(a, S_SRD2, S_WV, 512 * 8192)
    a(f"s_lshl_b32 s{T}, s{S_H}, 8\ns_lshl_b32 s{T+1}, s{S_W}, 19\ns_add_u32 s{T}, s{T}, s{T+1}\nv_lshlrev_b32 v3, 13, v2\nv_lshl_add_u32 v3, v1, 4, v3\nv_add_u32 v3, s{T}, v3")
    a(f"s_lshl_b32 s{T}, s{S_W}, 6\nv_lshlrev_b32 v4, 11, v2\nv_lshl_add_u32 v4, v1, 2, v4\nv_add_u32 v4, s{T}, v4\nv_add_u32 v5, 0x10000, v4")
    chunks = []
    for srd, pre, base in ((S_SRD1, 'a', 128), (S_SRD2, 'v', 128), (S_SRD0, 'a', 0)):
        for half in range(2):
            items = []
            for v in range(8 * half, 8 * half + 8):
                for m in range(4):
                    r = 32 * (v & 7) + 2 * m
                    items.append((4, r, r + 1, [f"{pre}{base+v*4+m}", f"{pre}{base+64+v*4+m}"], None))
            chunks.append((srd, 256 * half, items))
    load_w_lds(a, chunks, "v3", None, 16)
    rt_stamp(a, opts, 1, 96)
    dbg_wait(a, D_FINIT, 1, "v16", "v17"); dbg_wait(a, D_LN, 128, "v16", "v17")
    BUF = (16, 48); ACC = 80
    aq = lambda t, tt: ACC + (t * 2 + tt) * 4
    ak = lambda t, tt: ACC + 16 + (t * 2 + tt) * 4
    av = lambda tt, t: ACC + 32 + (tt * 2 + t) * 4
    def issue_batch(buf):
        for kk in range(4):
            for tt in range(2):
                a(f"global_load_dwordx4 {vr(buf+(kk*2+tt)*4,4)}, v{8+4*tt}, {sr(S_B0,2)} offset:{1024*kk} {xfl}")
    a(f"s_mov_b32 s{S_SEG}, s{S_P}\ns_lshl_b32 s{T}, s{S_SEG}, 15")
    base_ws(a, S_B0, T, XNF)
    issue_batch(BUF[0])
    a(f"s_lshl_b32 s{T}, s{S_H}, 8\ns_add_u32 s{T}, s{T}, s{S_W}\ns_add_u32 s{T}, s{T}, {hex(KVFLAG)}\nv_mov_b32 v5, s{T}\nv_mov_b32 v6, 1")
    a(f"s_mov_b32 s{T+7}, 0")
    a("s_waitcnt vmcnt(0)")
    a("L_qkv_seg:")
    for b in range(4):
        buf = BUF[b & 1]
        if b == 0: a("s_waitcnt vmcnt(6)")
        else: a("s_waitcnt vmcnt(0)")
        if b == 1:
            a(f"s_cmp_eq_u32 s{T+7}, 0\ns_cbranch_scc1 L_qkv_nofl\ns_mov_b64 exec, 1\nglobal_store_byte v4, v6, {sr(S_WS,2)} sc1\ns_mov_b64 exec, -1\nL_qkv_nofl:")
        adv = 4096 if b < 3 else 7 * 32768 - 3 * 4096
        a(f"s_add_u32 s{S_B0}, s{S_B0}, {adv}\ns_addc_u32 s{S_B0+1}, s{S_B0+1}, 0")
        issue_batch(BUF[(b + 1) & 1])
        for kk in range(4):
            v = 4 * b + kk
            for tt in range(2):
                x = vr(buf + (kk * 2 + tt) * 4, 4)
                for t in range(2):
                    for acc, W, swap in ((ak(t, tt), ar(128 + t * 64 + v * 4, 4), 0), (av(tt, t), vr(128 + t * 64 + v * 4, 4), 1), (aq(t, tt), ar(t * 64 + v * 4, 4), 0)):
                        c = "0" if v == 0 else vr(acc, 4)
                        if swap: mfma(a, vr(acc, 4), x, W, c)
                        else: mfma(a, vr(acc, 4), W, x, c)
    a(f"s_lshl_b32 s{T}, s{S_SEG}, 5\ns_add_u32 s{T}, s{T}, s{S_H}\ns_lshl_b32 s{T}, s{T}, 13\ns_lshl_b32 s{T+1}, s{S_W}, 10\ns_add_u32 s{T+2}, s{T}, s{T+1}\ns_add_u32 s{T+3}, s{T+2}, s{T+1}")
    base_ws(a, S_B1, T + 2, KF); base_ws(a, S_B2, T + 3, VF); base_ws(a, S_B3, T + 2, QF)
    for tt in range(2):
        for r in range(4): a(f"v_cvt_pk_bf16_f32 v{ak(0,tt)+r}, v{ak(0,tt)+r}, v{ak(1,tt)+r}")
        gs(a, ak(0, tt), 4 * tt, S_B1)
    for t in range(2):
        x, y = av(0, t), av(1, t)
        a(f"v_cvt_pk_bf16_f32 v{x}, v{x}, v{x+1}\nv_cvt_pk_bf16_f32 v{x+1}, v{x+2}, v{x+3}\nv_cvt_pk_bf16_f32 v{x+2}, v{y}, v{y+1}\nv_cvt_pk_bf16_f32 v{x+3}, v{y+2}, v{y+3}")
        gs(a, x, t, S_B2)
    for tt in range(2):
        for r in range(4): a(f"v_cvt_pk_bf16_f32 v{aq(0,tt)+r}, v{aq(0,tt)+r}, v{aq(1,tt)+r}")
        gs(a, aq(0, tt), 4 * tt, S_B3)
    a(f"s_lshl_b32 s{T}, s{S_SEG}, 2\nv_add_u32 v4, s{T}, v5\ns_mov_b32 s{T+7}, 1")
    a(f"s_add_u32 s{S_SEG}, s{S_SEG}, 7\ns_cmp_lt_u32 s{S_SEG}, 64\ns_cbranch_scc1 L_qkv_seg")
    a(f"s_waitcnt vmcnt(0)\ns_mov_b64 exec, 1\nglobal_store_byte v4, v6, {sr(S_WS,2)} sc1\ns_mov_b64 exec, -1")
    rt_stamp(a, opts, 2, 96)
    if opts.get('stop') == 'qkv': a("s_endpgm"); return
    set_srd(a, S_SRD0, S_WG, 512 * 3584); set_srd(a, S_SRD1, S_WU, 512 * 3584)
    a(f"s_lshr_b32 s{T}, s{S_WID}, 3\ns_lshl_b32 s{T}, s{T}, 1\ns_and_b32 s{T+1}, s{S_W}, 1\ns_add_u32 s{T}, s{T}, s{T+1}")
    a(f"s_lshl_b32 s{T+1}, s{T}, 6\nv_mul_u32_u24 v3, {8*3584}, v2\nv_lshl_add_u32 v3, v1, 2, v3\nv_add_u32 v3, s{T+1}, v3")
    a(f"s_and_b32 s{T+2}, s{S_WID}, 7\ns_lshl_b32 s{T+2}, s{T+2}, 1\ns_lshr_b32 s{T+3}, s{S_W}, 1\ns_add_u32 s{T+2}, s{T+2}, s{T+3}")
    a(f"s_lshl_b32 s{T+3}, s{T+2}, 17")
    base_ws(a, S_B0, T + 3, XNF)
    a(f"s_mul_i32 s{T+3}, s{T+2}, {8*57344}\ns_lshl_b32 s{T+4}, s{T}, 10\ns_add_u32 s{T+3}, s{T+3}, s{T+4}")
    base_ws(a, S_B1, T + 3, HF)
    a(f"s_lshl_b32 s{T+2}, s{T+2}, 7\ns_add_u32 s{T+2}, s{T+2}, {hex(HCNT)}\nv_mov_b32 v4, s{T+2}")
    for v in range(16): gl(a, 128 + 4 * v, v, S_B0, xfl)
    a("s_waitcnt vmcnt(0)")
    items = []
    for srd, base in ((S_SRD0, 0), (S_SRD1, 128)):
        for v in range(16):
            for m in range(4):
                o = (32 * v + 2 * m) * 3584
                items.append((srd, "v3", o, o + 3584, [f"a{base+v*4+m}", f"a{base+64+v*4+m}"], None))
    load_pairs(a, items, 16, 28)
    a(f"s_mov_b32 s{S_SEG}, 0\nL_d1:")
    for half in range(2):
        buf = 128 + 64 * half; nbuf = 128 + 64 * (1 - half)
        a("s_waitcnt vmcnt(1)")
        a(f"s_add_u32 s{S_B0}, s{S_B0}, 16384\ns_addc_u32 s{S_B0+1}, s{S_B0+1}, 0")
        for v in range(16): gl(a, nbuf + 4 * v, v, S_B0, xfl)
        for v in range(16):
            for q in range(4):
                mfma(a, vr(80 + 4 * q, 4), ar(q * 64 + v * 4, 4), vr(buf + 4 * v, 4), "0" if v == 0 else vr(80 + 4 * q, 4))
        for r in range(4):
            a(f"v_cvt_pk_bf16_f32 v16, v{80+r}, v{84+r}\nv_cvt_pk_bf16_f32 v17, v{88+r}, v{92+r}")
            a("v_lshlrev_b32 v18, 16, v16\nv_and_b32 v16, 0xffff0000, v16\nv_lshlrev_b32 v19, 16, v17\nv_and_b32 v17, 0xffff0000, v17")
            a(f"v_mul_f32 v18, v18, v19\nv_mul_f32 v16, v16, v17\nv_cvt_pk_bf16_f32 v{96+4*half+r}, v18, v16")
        gs(a, 96 + 4 * half, 0, S_B1)
        a(f"s_add_u32 s{S_B1}, s{S_B1}, 57344\ns_addc_u32 s{S_B1+1}, s{S_B1+1}, 0")
    a(f"s_add_u32 s{S_SEG}, s{S_SEG}, 2\ns_cmp_lt_u32 s{S_SEG}, 8\ns_cbranch_scc1 L_d1")
    a(f"s_waitcnt vmcnt(0)\ns_mov_b64 exec, 1\nglobal_atomic_add v4, v6, {sr(S_WS,2)} sc1\ns_mov_b64 exec, -1")
    rt_stamp(a, opts, 3, 96)
    if opts.get('stop') == 'd1': a("s_endpgm"); return
    a(f"s_cmp_lt_u32 s{S_WID}, 32\ns_cbranch_scc1 L_Erole")
    a(f"s_lshr_b32 s{S_XI}, s{S_WID}, 5\ns_sub_u32 s{S_XI}, s{S_XI}, 1\ns_bfe_u32 s{S_TT}, s{S_WID}, 0x10004\ns_and_b32 s{S_CG}, s{S_WID}, 15")
    set_srd(a, S_SRD0, S_WD, 1792 * 1024)
    a(f"s_mul_i32 s{T}, s{S_W}, {14*32*1024}\ns_lshl_b32 s{T+1}, s{S_CG}, 6\ns_add_u32 s{T}, s{T}, s{T+1}")
    a(f"v_lshlrev_b32 v3, 13, v2\nv_lshl_add_u32 v3, v1, 2, v3\nv_add_u32 v3, s{T}, v3")
    items = []
    for v in range(14):
        for m in range(4):
            o = (32 * v + 2 * m) * 1024
            items.append((S_SRD0, "v3", o, o + 1024, [f"a{v*4+m}", f"a{56+v*4+m}"], None))
    load_pairs(a, items, 16, 28)
    a(f"v_lshlrev_b32 v4, 7, v1\nv_add_u32 v4, {hex(HCNT)}, v4")
    wait_flag(a, "v4", S_WS, 56, "v16", sleep=2)
    a(f"s_lshl_b32 s{T}, s{S_XI}, 1\ns_add_u32 s{T}, s{T}, s{S_TT}\ns_mul_i32 s{T}, s{T}, 57344\ns_mul_i32 s{T+1}, s{S_W}, {14*1024}\ns_add_u32 s{T}, s{T}, s{T+1}")
    base_ws(a, S_B0, T, HF)
    a(f"s_lshl_b32 s{T}, s{S_W}, 11\nv_add_u32 v4, s{T}, v8")
    for v in range(14): gl(a, 128 + 4 * v, v, S_B0, "sc1")
    a(f"s_mov_b32 s{S_SEG}, 0\nL_d2:")
    for half in range(2):
        buf = 128 + 64 * half; nbuf = 128 + 64 * (1 - half)
        a("s_waitcnt vmcnt(0)")
        a(f"s_add_u32 s{S_B0}, s{S_B0}, {12*57344}\ns_addc_u32 s{S_B0+1}, s{S_B0+1}, 0")
        for v in range(14): gl(a, nbuf + 4 * v, v, S_B0, "sc1")
        for v in range(14):
            for t in range(2):
                mfma(a, vr(80 + 8 * half + 4 * t, 4), ar(t * 56 + v * 4, 4), vr(buf + 4 * v, 4), "0" if v == 0 else vr(80 + 8 * half + 4 * t, 4))
        a(f"ds_write_b128 v4, {vr(80+8*half,4)}\nds_write_b128 v4, {vr(84+8*half,4)} offset:1024\nv_add_u32 v4, 8192, v4")
    a(f"s_add_u32 s{S_SEG}, s{S_SEG}, 2\ns_cmp_lt_u32 s{S_SEG}, 12\ns_cbranch_scc1 L_d2")
    a("s_waitcnt vmcnt(0) lgkmcnt(0)\ns_barrier")
    GBUF = 98304
    a(f"s_lshl_b32 s{T}, s{S_W}, 13\nv_add_u32 v4, s{T}, v8\ns_lshl_b32 s{T}, s{S_W}, 10\ns_add_u32 s{T}, s{T}, {GBUF}\nv_add_u32 v5, s{T}, v8")
    a(f"s_mov_b32 s{S_C1}, {hex(f32bits(-LOG2E))}")
    for i in range(3):
        for q in range(8): a(f"ds_read_b128 {vr(16+4*q,4)}, v4 offset:{1024*q}")
        a("s_waitcnt lgkmcnt(0)")
        for r in range(8):
            a(f"v_add_f32 v{16+r}, v{16+r}, v{24+r}\nv_add_f32 v{32+r}, v{32+r}, v{40+r}\nv_add_f32 v{16+r}, v{16+r}, v{32+r}")
            rnd_bf16(a, f"v{16+r}", f"v{16+r}")
            a(f"v_mul_f32 v{24+r}, s{S_C1}, v{16+r}\nv_exp_f32 v{24+r}, v{24+r}\nv_add_f32 v{24+r}, 1.0, v{24+r}\nv_rcp_f32 v{24+r}, v{24+r}\nv_mul_f32 v{16+r}, v{16+r}, v{24+r}")
        for r in range(4): a(f"v_cvt_pk_bf16_f32 v{48+r}, v{16+r}, v{20+r}")
        a(f"ds_write_b128 v5, v[48:51] offset:{4096*i}\nv_add_u32 v4, 32768, v4")
    a("s_waitcnt lgkmcnt(0)\ns_barrier")
    rt_stamp(a, opts, 4, 96)
    set_srd(a, S_SRD0, S_WO, 4096 * 1024)
    a(f"s_lshl_b32 s{T}, s{S_W}, 20\ns_lshl_b32 s{T+1}, s{S_CG}, 6\ns_add_u32 s{T}, s{T}, s{T+1}")
    a(f"v_lshlrev_b32 v3, 13, v2\nv_lshl_add_u32 v3, v1, 2, v3\nv_add_u32 v3, s{T}, v3")
    items = []
    for v in range(32):
        for m in range(4):
            o = (32 * v + 2 * m) * 1024
            items.append((S_SRD0, "v3", o, o + 1024, [f"a{v*4+m}", f"a{128+v*4+m}"], None))
    load_pairs(a, items, 16, 28)
    a(f"s_mov_b32 s{S_NF}, s{S_XI}\ns_mov_b32 s{S_IF}, 0")
    a(f"s_lshl_b32 s{T}, s{S_TT}, 14\ns_lshl_b32 s{T+1}, s{S_CG}, 6\ns_add_u32 s{T}, s{T}, s{T+1}\nv_lshlrev_b32 v7, 10, v1\nv_lshl_add_u32 v7, v2, 4, v7\nv_add_u32 v7, s{T}, v7")
    rt_stamp(a, opts, 5, 96)
    a("L_ef:")
    rt_stamp(a, opts, 6, 96)
    a("L_doF:")
    a(f"s_cmp_ge_u32 s{S_NF}, 64\ns_cbranch_scc1 L_end")
    a(f"s_lshl_b32 s{T}, s{S_NF}, 15\nv_add_u32 v3, s{T}, v7\nglobal_load_dwordx4 v[112:115], v3, {sr(S_X,2)}")
    a(f"s_lshl_b32 s{T}, s{S_NF}, 7\ns_lshl_b32 s{T+1}, s{S_W}, 5\ns_add_u32 s{T}, s{T}, s{T+1}\ns_add_u32 s{T}, s{T}, {hex(OFLAG)}\nv_and_b32 v4, 7, v0\nv_lshlrev_b32 v4, 2, v4\nv_add_u32 v4, s{T}, v4")
    a(f"s_lshl_b32 s{T}, s{S_NF}, 18\ns_lshl_b32 s{T+1}, s{S_TT}, 17\ns_add_u32 s{T}, s{T}, s{T+1}\ns_lshl_b32 s{T+1}, s{S_W}, 15\ns_add_u32 s{T}, s{T}, s{T+1}")
    base_ws(a, S_B0, T, OF)
    wait_flag(a, "v4", S_WS, 1, "v16", sleep=1)
    for v in range(32): gl(a, 128 + 4 * v, v, S_B0, "sc1")
    for v in range(32):
        a(f"s_waitcnt vmcnt({31-v})")
        for t in range(2): mfma(a, vr(16 + 4 * t, 4), ar(t * 128 + v * 4, 4), vr(128 + 4 * v, 4), "0" if v == 0 else vr(16 + 4 * t, 4))
    a(f"s_and_b32 s{T}, s{S_IF}, 1\ns_lshl_b32 s{T}, s{T}, 13\ns_lshl_b32 s{T+1}, s{S_W}, 11\ns_add_u32 s{T+1}, s{T+1}, s{T}\nv_add_u32 v4, s{T+1}, v8\nv_add_u32 v5, s{T}, v8")
    a("ds_write_b128 v4, v[16:19]\nds_write_b128 v4, v[20:23] offset:1024\ns_waitcnt lgkmcnt(0)\ns_barrier")
    a(f"s_and_b32 s{T}, s{S_IF}, 3\ns_cmp_lg_u32 s{T}, s{S_W}\ns_cbranch_scc1 L_Fdone")
    for q in range(8): a(f"ds_read_b128 {vr(16+4*q,4)}, v5 offset:{1024*q}")
    a(f"s_lshl_b32 s{T}, s{S_IF}, 10\ns_add_u32 s{T}, s{T}, {GBUF}\nv_add_u32 v4, s{T}, v8\nds_read_b128 v[116:119], v4")
    a("s_waitcnt lgkmcnt(0)")
    for r in range(8): a(f"v_add_f32 v{16+r}, v{16+r}, v{24+r}\nv_add_f32 v{32+r}, v{32+r}, v{40+r}\nv_add_f32 v{16+r}, v{16+r}, v{32+r}")
    for r in range(4):
        a(f"v_cvt_pk_bf16_f32 v24, v{16+r}, v{20+r}\nv_lshlrev_b32 v25, 16, v24\nv_and_b32 v24, 0xffff0000, v24")
        a(f"v_lshlrev_b32 v26, 16, v{116+r}\nv_and_b32 v27, 0xffff0000, v{116+r}\nv_mul_f32 v25, v25, v26\nv_mul_f32 v24, v24, v27")
        a(f"v_cvt_pk_bf16_f32 v24, v25, v24\nv_lshlrev_b32 v25, 16, v24\nv_and_b32 v24, 0xffff0000, v24")
        a(f"v_lshlrev_b32 v26, 16, v{112+r}\nv_and_b32 v27, 0xffff0000, v{112+r}\nv_add_f32 v25, v25, v26\nv_add_f32 v24, v24, v27\nv_cvt_pk_bf16_f32 v{120+r}, v25, v24")
    a(f"global_store_dwordx4 v3, v[120:123], {sr(S_OUT,2)}")
    a("L_Fdone:")
    a(f"s_add_u32 s{S_NF}, s{S_NF}, 6\ns_add_u32 s{S_IF}, s{S_IF}, 1\ns_branch L_ef")
    a("L_Erole:")
    a(f"s_lshr_b32 s{S_NE}, s{S_WID}, 3")
    a(f"s_and_b32 s{S_HE}, s{S_WID}, 7\ns_lshl_b32 s{S_HE}, s{S_HE}, 2\ns_add_u32 s{S_HE}, s{S_HE}, s{S_W}")
    a("v_lshlrev_b32 v3, 2, v2")
    for r in range(4):
        a(f"v_add_u32 v4, {r}, v3\nv_cmp_le_u32 {sr(S_MASK+2*r,2)}, v4, v1")
    a(f"s_mov_b32 s{S_C1}, {hex(f32bits(SCALE))}\ns_mov_b32 s{S_C2}, {hex(f32bits(LOG2E))}")
    a("L_e:")
    rt_stamp(a, opts, 6, 96)
    a(f"s_cmp_ge_u32 s{S_NE}, 64\ns_cbranch_scc1 L_end")
    Q, K, V, KMr, VMr = 128, 160, 192, 224, 240
    a(f"s_lshl_b32 s{T}, s{S_HE}, 8\ns_lshl_b32 s{T+1}, s{S_NE}, 2\ns_add_u32 s{T}, s{T}, s{T+1}\ns_add_u32 s{T}, s{T}, {hex(KVFLAG)}\nv_mov_b32 v4, s{T}\nv_mov_b32 v5, 0x01010101")
    wait_flag(a, "v4", S_WS, "v5", "v16", sleep=2)
    a(f"s_lshl_b32 s{T}, s{S_NE}, 5\ns_add_u32 s{T}, s{T}, s{S_HE}\ns_lshl_b32 s{T+1}, s{T}, 13")
    base_ws(a, S_B0, T + 1, QF); base_ws(a, S_B1, T + 1, KF); base_ws(a, S_B2, T + 1, VF); base_ws(a, S_B3, T + 1, KM)
    for k in range(8): gl(a, Q + 4 * k, k, S_B0, "sc1")
    for k in range(8): gl(a, K + 4 * k, k, S_B1, "sc1")
    for k in range(8): gl(a, V + 4 * k, k, S_B2, "sc1")
    a(f"s_lshl_b32 s{T+1}, s{T}, 2\ns_add_u32 s{T+2}, s{T+1}, {hex(OFLAG)}\nv_mov_b32 v3, s{T+2}\ns_mul_i32 s{T+2}, s{S_HE}, 384\ns_lshl_b32 s{T+1}, s{S_NE}, 2\ns_add_u32 s{T+2}, s{T+2}, s{T+1}\ns_add_u32 s{T+2}, s{T+2}, {hex(KMFLAG)}\nv_mov_b32 v4, s{T+2}")
    a("s_waitcnt vmcnt(8)")
    SX = {(0, 0): 16, (0, 1): 24, (1, 1): 28}; SM = {0: 20, 1: 32}
    for ks in range(4):
        for (kt, qt), d in SX.items():
            mfma(a, vr(d, 4), vr(K + (kt * 4 + ks) * 4, 4), vr(Q + (qt * 4 + ks) * 4, 4), "0" if ks == 0 else vr(d, 4))
    def round_scores(d):
        for r in (0, 2):
            x, y = d + r, d + r + 1
            a(f"v_cvt_pk_bf16_f32 v40, v{x}, v{y}\nv_lshlrev_b32 v{x}, 16, v40\nv_and_b32 v{y}, 0xffff0000, v40")
            a(f"v_mul_f32 v{x}, s{S_C1}, v{x}\nv_mul_f32 v{y}, s{S_C1}, v{y}\nv_cvt_pk_bf16_f32 v40, v{x}, v{y}\nv_lshlrev_b32 v{x}, 16, v40\nv_and_b32 v{y}, 0xffff0000, v40")
    a(f"v_mov_b32 v41, {hex(f32bits(-1e9))}")
    for (kt, qt), d in SX.items():
        round_scores(d)
        if kt == qt:
            for r in range(4): a(f"v_cndmask_b32 v{d+r}, v41, v{d+r}, {sr(S_MASK+2*r,2)}")
    wait_flag(a, "v4", S_WS, 1, "v40", sleep=1)
    for k in range(4): gl(a, KMr + 4 * k, 2 * k, S_B3, "sc1")
    for k in range(4): gl(a, VMr + 4 * k, 2 * k + 1, S_B3, "sc1")
    a("s_waitcnt vmcnt(4)")
    for ks in range(4):
        for qt, d in SM.items():
            mfma(a, vr(d, 4), vr(KMr + ks * 4, 4), vr(Q + (qt * 4 + ks) * 4, 4), "0" if ks == 0 else vr(d, 4))
    PX = {0: 112, 1: 116}; PM = {0: 120, 1: 122}
    for qt in range(2):
        round_scores(SM[qt])
        vals = list(range(16, 24)) if qt == 0 else list(range(24, 36))
        mvals = vals[-4:]; xvals = vals[:-4]
        a(f"v_max3_f32 v42, v{vals[0]}, v{vals[1]}, v{vals[2]}")
        rest = vals[3:]
        while len(rest) >= 2: a(f"v_max3_f32 v42, v42, v{rest[0]}, v{rest[1]}"); rest = rest[2:]
        if rest: a(f"v_max_f32 v42, v42, v{rest[0]}")
        xlane_sum_g(a, "v42", "v43", "v_max_f32")
        for x in vals: a(f"v_sub_f32 v{x}, v{x}, v42\nv_mul_f32 v{x}, s{S_C2}, v{x}\nv_exp_f32 v{x}, v{x}")
        a(f"v_add_f32 v42, v{mvals[0]}, v{mvals[1]}\nv_add_f32 v43, v{mvals[2]}, v{mvals[3]}\nv_add_f32 v42, v42, v43\nv_mul_f32 v42, 0.5, v42")
        for x in xvals: a(f"v_add_f32 v42, v42, v{x}")
        xlane_sum_g(a, "v42", "v43")
        a("v_rcp_f32 v42, v42")
        for x in vals: a(f"v_mul_f32 v{x}, v{x}, v42")
        for i in range(0, len(xvals), 2): a(f"v_cvt_pk_bf16_f32 v{PX[qt]+i//2}, v{xvals[i]}, v{xvals[i+1]}")
        if qt == 0: a(f"v_mov_b32 v{PX[0]+2}, 0\nv_mov_b32 v{PX[0]+3}, 0")
        a(f"v_cvt_pk_bf16_f32 v{PM[qt]}, v{mvals[0]}, v{mvals[1]}\nv_cvt_pk_bf16_f32 v{PM[qt]+1}, v{mvals[2]}, v{mvals[3]}")
    a("s_waitcnt vmcnt(0)")
    OA = lambda et, qt: 48 + (qt * 8 + et) * 4
    for qt in range(2):
        for et in range(8): mfma(a, vr(OA(et, qt), 4), vr(V + et * 4, 4), vr(PX[qt], 4), "0")
        for et in range(8): mfma16(a, vr(OA(et, qt), 4), vr(VMr + et * 2, 2), vr(PM[qt], 2), vr(OA(et, qt), 4))
    a(f"s_lshl_b32 s{T}, s{S_NE}, 18\ns_lshl_b32 s{T+1}, s{S_HE}, 12\ns_add_u32 s{T}, s{T}, s{T+1}")
    base_ws(a, S_B0, T, OF); base_ws(a, S_B1, T, OF + 131072)
    for qt in range(2):
        for wp in range(4):
            x, y = OA(2 * wp, qt), OA(2 * wp + 1, qt)
            for r in range(4): a(f"v_cvt_pk_bf16_f32 v{x+r}, v{x+r}, v{y+r}")
            gs(a, x, wp, S_B0 if qt == 0 else S_B1)
    a(f"s_waitcnt vmcnt(0)\ns_mov_b64 exec, 1\nglobal_store_dword v3, v6, {sr(S_WS,2)} sc1\ns_mov_b64 exec, -1")
    a(f"s_add_u32 s{S_NE}, s{S_NE}, 4\ns_branch L_e")
```

```python
MB = 1 << 20
XNF = 0
PBUF = 2 * MB
MBUF = 3 * MB
FLAGS = 4 * MB
KVFLAG = FLAGS
KMFLAG = FLAGS + 0x8100
OFLAG = FLAGS + 0x5000
HCNT = FLAGS + 0x7000
FLAGS_SIZE = 0xC000
HF = 8 * MB
QF = 16 * MB
KF = 32 * MB
VF = 48 * MB
KM = 65 * MB
OF = 82 * MB
PROF = 100 * MB
WS_USED = 102 * MB

def chain_d(u, k):
    j = u >> 1; gA = k >> 4
    wp = 2 * (u & 1) + (gA >> 1); tp = gA & 1; t8 = 2 * j + tp
    p = k & 15; half = (p >> 1) & 1; c = 2 * (p >> 2) + (p & 1)
    n = 8 * half + c
    return 128 * wp + 8 * n + t8

def mem_frag_index():
    import numpy as np
    R = np.zeros((8, 64, 8), dtype=np.int64); C = np.zeros((8, 64, 8), dtype=np.int64)
    for u in range(8):
        for l in range(64):
            i = l & 15; g = l >> 4
            for c in range(8):
                k = 16 * g + 4 * (c >> 1) + (c & 1) + (2 if i >= 8 else 0)
                R[u, l, c] = i & 7; C[u, l, c] = chain_d(u, k)
    return R, C
```

```python
import sys
from common import *
from gen_chain import gen_chain
from gen_worker import gen_worker

KNAME = NAME + "_kernel"
def gen_main(a, opts):
    head(a, KNAME)
    a("s_cmp_ge_u32 s2, 256\ns_cbranch_scc1 L_end")
    a("s_load_dwordx4 s[4:7], s[0:1], 0\ns_load_dwordx8 s[8:15], s[0:1], 16\ns_load_dwordx4 s[16:19], s[0:1], 64\ns_load_dwordx8 s[20:27], s[0:1], 80")
    a(f"s_getreg_b32 s{S_XCC}, hwreg(HW_REG_XCC_ID)\ns_and_b32 s{S_XCC}, s{S_XCC}, 7")
    a(f"v_lshrrev_b32 v1, 6, v0\nv_readfirstlane_b32 s{S_W}, v1\nv_and_b32 v0, 63, v0")
    a(f"s_mov_b32 s{S_PLO}, 0x05040100\ns_mov_b32 s{S_PHI}, 0x07060302\ns_mov_b32 s{S_SPIN}, 0")
    a(f"s_lshl_b32 s{S_T}, s{S_XCC}, 2\ns_cmp_eq_u32 s{S_XCC}, 0\ns_cselect_b32 s{S_T}, {D_RANK0*4}, s{S_T}\nv_mov_b32 v3, s{S_T}\nv_mov_b32 v4, 1\nv_mov_b32 v5, 0")
    a("s_waitcnt lgkmcnt(0)")
    a(f"s_cmp_lg_u32 s{S_W}, 0\ns_cbranch_scc1 L_norank")
    a(f"s_mov_b64 exec, 1\nglobal_atomic_add v6, v3, v4, {sr(S_DBG,2)} sc0\ns_mov_b64 exec, -1")
    a("L_norank:")
    a(f"s_cmp_eq_u32 s{S_XCC}, 0\ns_cbranch_scc1 L_nopf")
    if not opts.get('nopf'):
        a(f"s_lshl_b32 s{S_T}, s2, 2\ns_add_u32 s{S_T}, s{S_T}, s{S_W}\ns_lshl_b32 s{S_T}, s{S_T}, 12\nv_lshlrev_b32 v7, 4, v0\nv_add_u32 v7, s{S_T}, v7")
        pfm = [dict(q=S_WQ, k=S_WK, v=S_WV, o=S_WO)[c] for c in opts.get('pf', 'qo')]
        for m, base in enumerate(pfm):
            for k in range(4): a(f"global_load_dwordx4 {vr(128+16*m+4*k,4)}, v7, {sr(base,2)} offset:{1024*k}")
    a("L_nopf:")
    a(f"s_cmp_lg_u32 s{S_W}, 0\ns_cbranch_scc1 L_norank2")
    a(f"s_cmp_eq_u32 s{S_XCC}, 0\ns_cbranch_scc1 L_rk0\ns_waitcnt vmcnt({0 if opts.get('nopf') else 4*len(opts.get('pf', 'qo'))})\ns_branch L_rk1\nL_rk0:\ns_waitcnt vmcnt(0)\nL_rk1:")
    a("s_mov_b64 exec, 1\nds_write_b32 v5, v6\ns_waitcnt lgkmcnt(0)\ns_mov_b64 exec, -1")
    a(f"L_norank2:\ns_barrier\nds_read_b32 v6, v5\ns_waitcnt lgkmcnt(0)\nv_readfirstlane_b32 s{S_RANK}, v6\ns_barrier")
    a(f"s_cmp_ge_u32 s{S_RANK}, 32\ns_cbranch_scc1 L_fail")
    a(f"s_lshl_b32 s96, s{S_XCC}, 5\ns_add_u32 s96, s96, s{S_RANK}")
    rt_stamp(a, opts, 0, 96)
    a(f"s_cmp_lg_u32 s{S_XCC}, 0\ns_cbranch_scc1 L_worker")
    a.role = 'c'
    gen_chain(a, opts)
    a.role = 'w'
    a("L_worker:")
    gen_worker(a, opts)
    a("L_fail:")
    a(f"s_mov_b64 exec, 1\nv_mov_b32 v1, {D_FAIL*4}\nv_mov_b32 v2, 1\nglobal_atomic_add v1, v2, {sr(S_DBG,2)}\ns_waitcnt vmcnt(0)")
    a("L_end:\ns_endpgm")

HEADER = open("cdna_kernels/%s.s.ref" % NAME).read().split("; Override launch")[0] if __name__ == "__main__" or True else ""

def build(opts=None, listform=True):
    opts = opts or {}
    a = Asm()
    gen_main(a, opts)
    body = a.finish()
    txt = HEADER
    if listform: txt += "; @launch kernel=%s grid=(256,1,1) block=(256,1,1) lds=163840\n" % KNAME
    else: txt += "; @launch grid=(256,1,1) block=(256,1,1) lds=163840\n"
    txt += '.amdgcn_target "amdgcn-amd-amdhsa--gfx950"\n.text\n' + body
    txt += kd(KNAME, 512, 102, 256)
    return txt

if __name__ == "__main__":
    opts = eval(sys.argv[2]) if len(sys.argv) > 2 else {}
    out = sys.argv[1] if len(sys.argv) > 1 else "cdna_kernels/%s.s" % NAME
    open(out, "w").write(build(opts, listform=len(sys.argv) > 1 and not opts.get("dbgstamp")))
    print("wrote", out)
```

```python
import sys, math, struct
from asmlib import Asm
from layout import *

NAME = "recurrent_scan__memory_aug_recurrent_mem_tr__glu_gated_bilinear__prompt"
SPIN_MAX = 0x400000

def f32bits(x): return struct.unpack('<I', struct.pack('<f', x))[0]
def vr(b, n=1): return "v%d" % b if n == 1 else "v[%d:%d]" % (b, b + n - 1)
def ar(b, n=1): return "a%d" % b if n == 1 else "a[%d:%d]" % (b, b + n - 1)
def sr(b, n=1): return "s%d" % b if n == 1 else "s[%d:%d]" % (b, b + n - 1)

class Cnt:
    def __init__(self, a, name, mx): self.a = a; self.name = name; self.q = []; self.mx = mx
    def issue(self, tag): self.q.append(tag)
    def wait(self, tag):
        if tag not in self.q: return
        idx = max(i for i, t in enumerate(self.q) if t == tag)
        n = len(self.q) - 1 - idx
        assert n <= self.mx, (self.name, n)
        self.a("s_waitcnt %s(%d)" % (self.name, n))
        self.q = self.q[idx + 1:]
    def waitall(self):
        self.a("s_waitcnt %s(0)" % self.name); self.q = []
    def reset(self): self.q = []

def kd(name, vgpr, sgpr, accum):
    return f"""
.section .rodata,"a"
.p2align 6
.amdhsa_kernel {name}
  .amdhsa_next_free_vgpr {vgpr}
  .amdhsa_next_free_sgpr {sgpr}
  .amdhsa_accum_offset {accum}
  .amdhsa_group_segment_fixed_size 0
  .amdhsa_kernarg_size 112
  .amdhsa_user_sgpr_count 2
  .amdhsa_user_sgpr_kernarg_segment_ptr 1
  .amdhsa_system_sgpr_workgroup_id_x 1
  .amdhsa_float_denorm_mode_32 3
.end_amdhsa_kernel
.text
"""

def head(a, name):
    a(f".globl {name}\n.p2align 8\n.type {name},@function\n{name}:")

def rnd_bf16(a, dst, src):
    a(f"v_cvt_pk_bf16_f32 {dst}, {src}, {src}\nv_and_b32 {dst}, 0xffff0000, {dst}")

def xlane_sum_g(a, v, t, op="v_add_f32"):
    a(f"v_mov_b32 {t}, {v}\nv_permlane16_swap_b32 {v}, {t}\n{op} {v}, {v}, {t}")
    a(f"v_mov_b32 {t}, {v}\nv_permlane32_swap_b32 {v}, {t}\n{op} {v}, {v}, {t}")

def gen_prep(a):
    head(a, "prep_kernel")
    a("s_cmp_ge_u32 s2, 256\ns_cbranch_scc1 L_prep_end")
    a("s_load_dwordx4 s[4:7], s[0:1], 0\ns_load_dwordx2 s[8:9], s[0:1], 104")
    a("v_and_b32 v1, 63, v0\nv_lshrrev_b32 v2, 6, v0\nv_and_b32 v3, 15, v0\nv_bfe_u32 v4, v0, 4, 2")
    a("s_cmp_ge_u32 s2, 128\ns_cbranch_scc1 L_prep_init")
    a("s_lshl_b32 s10, s2, 14")
    a("v_lshlrev_b32 v5, 10, v3\nv_lshl_add_u32 v5, v2, 8, v5\nv_lshl_add_u32 v5, v4, 4, v5\nv_add_u32 v5, s10, v5")
    a("s_waitcnt lgkmcnt(0)")
    for j in range(4): a(f"global_load_dwordx4 {vr(48+4*j,4)}, v5, s[4:5] offset:{64*j}")
    a("v_lshlrev_b32 v6, 2, v3\nv_lshl_add_u32 v7, v2, 6, v6")
    a("s_waitcnt vmcnt(0)")
    for i in range(16):
        a(f"v_lshlrev_b32 v{16+2*i}, 16, v{48+i}\nv_and_b32 v{17+2*i}, 0xffff0000, v{48+i}")
    a("v_add_f32 v8, v16, v17")
    for i in range(2, 32): a(f"v_add_f32 v8, v8, v{16+i}")
    xlane_sum_g(a, "v8", "v9")
    a("ds_write_b32 v7, v8\ns_waitcnt lgkmcnt(0)\ns_barrier")
    for j in range(4): a(f"ds_read_b32 v{10+j}, v6 offset:{64*j}")
    a("s_waitcnt lgkmcnt(0)\nv_add_f32 v10, v10, v11\nv_add_f32 v12, v12, v13\nv_add_f32 v10, v10, v12")
    a(f"v_mul_f32 v10, {hex(f32bits(1/512))}, v10")
    a("v_sub_f32 v9, v16, v10\nv_mul_f32 v8, v9, v9")
    for i in range(1, 32): a(f"v_sub_f32 v9, v{16+i}, v10\nv_fmac_f32 v8, v9, v9")
    xlane_sum_g(a, "v8", "v9")
    a("ds_write_b32 v7, v8 offset:256\ns_waitcnt lgkmcnt(0)\ns_barrier")
    for j in range(4): a(f"ds_read_b32 v{11+j}, v6 offset:{256+64*j}")
    a("s_waitcnt lgkmcnt(0)\nv_add_f32 v11, v11, v12\nv_add_f32 v13, v13, v14\nv_add_f32 v11, v11, v13")
    a(f"v_mul_f32 v11, {hex(f32bits(1/512))}, v11")
    rnd_bf16(a, "v11", "v11")
    a(f"v_add_f32 v11, {hex(f32bits(1e-5))}, v11"); rnd_bf16(a, "v11", "v11")
    a("v_sqrt_f32 v11, v11"); rnd_bf16(a, "v11", "v11")
    a("v_rcp_f32 v12, v11")
    rnd_bf16(a, "v10", "v10")
    for i in range(16):
        x0, x1 = 16 + 2 * i, 17 + 2 * i
        a(f"v_sub_f32 v{x0}, v{x0}, v10\nv_sub_f32 v{x1}, v{x1}, v10\nv_cvt_pk_bf16_f32 v8, v{x0}, v{x1}")
        a(f"v_lshlrev_b32 v{x0}, 16, v8\nv_and_b32 v{x1}, 0xffff0000, v8")
        for x in (x0, x1):
            a(f"v_mul_f32 v8, v{x}, v12\nv_fma_f32 v9, -v8, v11, v{x}\nv_fma_f32 v{x}, v9, v12, v8")
        a(f"v_cvt_pk_bf16_f32 v{48+i}, v{x0}, v{x1}")
    a("v_lshlrev_b32 v5, 4, v1\nv_lshl_add_u32 v5, v2, 12, v5\nv_add_u32 v5, s10, v5")
    for j in range(4): a(f"global_store_dwordx4 v5, {vr(48+4*j,4)}, s[8:9] offset:{1024*j}")
    a("s_endpgm")
    a("L_prep_init:")
    a("s_sub_u32 s10, s2, 128\ns_lshl_b32 s11, s10, 12\nv_lshlrev_b32 v5, 4, v0\nv_add_u32 v5, s11, v5")
    a("v_mov_b32 v8, 0x02020202\nv_mov_b32 v9, v8\nv_mov_b32 v10, v8\nv_mov_b32 v11, v8")
    a("v_mov_b32 v12, -1\nv_mov_b32 v13, -1\nv_mov_b32 v14, -1\nv_mov_b32 v15, -1")
    a("v_mov_b32 v16, 0\nv_mov_b32 v17, 0\nv_mov_b32 v18, 0\nv_mov_b32 v19, 0")
    a(f"v_add_u32 v6, {hex(PBUF)}, v5\nv_add_u32 v7, {hex(MBUF+8192)}, v5\nv_add_u32 v20, {hex(FLAGS)}, v5")
    a("s_waitcnt lgkmcnt(0)")
    a("global_store_dwordx4 v6, v[12:15], s[8:9]\nglobal_store_dwordx4 v7, v[12:15], s[8:9]\nv_add_u32 v6, 0x80000, v6\nglobal_store_dwordx4 v6, v[12:15], s[8:9]")
    a(f"s_cmp_ge_u32 s10, {FLAGS_SIZE//4096}\ns_cbranch_scc1 L_prep_nf")
    a("global_store_dwordx4 v20, v[16:19], s[8:9]")
    a("L_prep_nf:")
    a("s_cmp_lt_u32 s10, 126\ns_cbranch_scc1 L_prep_end")
    a("s_sub_u32 s11, s10, 126\ns_lshl_b32 s11, s11, 2\nv_add_u32 v21, s11, v2")
    a("v_and_b32 v22, 1, v21\nv_lshlrev_b32 v22, 8, v22\nv_lshrrev_b32 v23, 1, v4\nv_lshl_add_u32 v22, v23, 7, v22")
    a("v_lshrrev_b32 v23, 3, v3\nv_lshl_add_u32 v22, v23, 6, v22\nv_lshrrev_b32 v23, 1, v21\nv_lshl_add_u32 v22, v23, 1, v22")
    a("v_and_b32 v23, 1, v4\nv_add_u32 v22, v22, v23\nv_and_b32 v23, 7, v3\nv_lshl_add_u32 v22, v23, 9, v22\nv_lshlrev_b32 v22, 1, v22")
    for c in range(8): a(f"global_load_ushort v{24+c}, v22, s[6:7] offset:{16*c}")
    a("s_waitcnt vmcnt(0)")
    for c in range(4): a(f"v_lshl_or_b32 v{32+c}, v{25+2*c}, 16, v{24+2*c}\nv_min_u32 v{32+c}, 0xfffffffe, v{32+c}")
    a(f"v_lshlrev_b32 v22, 10, v21\nv_lshl_add_u32 v22, v1, 4, v22\nv_add_u32 v22, {hex(MBUF)}, v22")
    a("global_store_dwordx4 v22, v[32:35], s[8:9]")
    a("L_prep_end:\ns_endpgm")

S_X, S_WQ, S_WK, S_WV, S_WO = 4, 8, 10, 12, 14
S_WG, S_WU, S_WD, S_OUT, S_DBG, S_WS = 16, 18, 20, 22, 24, 26
S_W, S_RANK, S_XCC, S_WID = 28, 29, 30, 31
S_SRD0, S_SRD1, S_SRD2, S_SRD3 = 48, 52, 56, 60
S_SOFF = 36
S_PLO, S_PHI = 37, 38
S_SPIN = 39
S_T = 40

def set_srd(a, srd, base, nbytes):
    a(f"s_mov_b32 s{srd}, s{base}\ns_and_b32 s{srd+1}, s{base+1}, 0xffff\ns_mov_b32 s{srd+2}, {hex(nbytes)}\ns_mov_b32 s{srd+3}, 0x20000")

def load_pairs(a, items, tmp, depth, width=1, fl=""):
    cur = [None]
    sfx = {1: "dword", 4: "dwordx4"}[width]
    def ld(dst, srd, voff, off):
        if cur[0] is None or not (0 <= off - cur[0] <= 4095):
            cur[0] = off; a(f"s_mov_b32 s{S_SOFF}, {hex(off)}")
        o = off - cur[0]
        a(f"buffer_load_{sfx} {vr(dst,width)}, {voff}, {sr(srd,4)}, s{S_SOFF} offen" + (f" offset:{o}" if o else "") + " " + fl)
    n = len(items)
    assert 2 * depth <= 62
    def slot(i): return tmp + 4 + (i % depth) * 2 * width
    def issue(i):
        it = items[i]; b = slot(i)
        ld(b, it[0], it[1], it[2]); ld(b + width, it[0], it[1], it[3])
    for i in range(min(depth, n)): issue(i)
    for i in range(n):
        outstanding = min(depth, n - i)
        a(f"s_waitcnt vmcnt({2*(outstanding-1)})")
        b = slot(i)
        dests, post = items[i][4], items[i][5]
        for x in range(width):
            for hh, sel in ((0, S_PLO), (1, S_PHI)):
                d = dests[2 * x + hh]
                if d[0] == 'v': a(f"v_perm_b32 {d}, v{b+width+x}, v{b+x}, s{sel}")
                else: a(f"v_perm_b32 v{tmp+hh}, v{b+width+x}, v{b+x}, s{sel}\nv_accvgpr_write_b32 {d}, v{tmp+hh}")
        if post: post()
        if i + depth < n: issue(i + depth)

def spin_check(a, fail="L_fail"):
    a(f"s_add_u32 s{S_SPIN}, s{S_SPIN}, 1\ns_cmp_gt_u32 s{S_SPIN}, {hex(SPIN_MAX)}\ns_cbranch_scc1 {fail}")

def wait_flag(a, voff, base, val, vtmp, cmp="v_cmp_ne_u32", sleep=0, width=1):
    L = a.lab("wf")
    a(f"{L}:\nglobal_load_dword {vtmp}, {voff}, {sr(base,2)} sc1")
    spin_check(a)
    if sleep: a(f"s_sleep {sleep}")
    a(f"s_waitcnt vmcnt(0)\n{cmp} vcc, {val}, {vtmp}\ns_cbranch_vccnz {L}")


def rt_stamp(a, opts, idx, who):
    if opts.get('dbgstamp'):
        k = opts['dbgstamp'].get((getattr(a, 'role', 'x'), idx))
        if k is None: return
        L = a.lab("ds")
        a(f"s_cmp_lg_u32 s{S_W}, 0\ns_cbranch_scc1 {L}\ns_and_b32 s32, s{S_RANK}, 7\ns_cmp_lg_u32 s32, 0\ns_cbranch_scc1 {L}")
        if idx == 6: a(f"s_cmp_lt_u32 s80, 60\ns_cbranch_scc1 {L}")
        a(f"s_memrealtime s[32:33]\ns_waitcnt lgkmcnt(0)\nv_mov_b32 v126, {4*(8+k)}\nv_mov_b32 v127, s32\ns_mov_b64 exec, 1\nglobal_atomic_umax v126, v127, {sr(S_DBG,2)} sc1")
        if k == 1: a(f"v_not_b32 v127, v127\nv_mov_b32 v126, 32\nglobal_atomic_umax v126, v127, {sr(S_DBG,2)} sc1")
        a(f"s_mov_b64 exec, -1\n{L}:")
        return
    if not opts.get('prof'): return
    a(f"s_memrealtime s[32:33]\ns_lshl_b32 s34, s{who}, 8\ns_lshl_b32 s35, s{S_W}, 6\ns_add_u32 s34, s34, s35\ns_add_u32 s34, s34, {hex(PROF + idx*4)}\ns_waitcnt lgkmcnt(0)")
    a(f"v_mov_b32 v126, s34\nv_mov_b32 v127, s32\nglobal_store_dword v126, v127, {sr(S_WS,2)}\ns_waitcnt vmcnt(0)")

D_RANK0 = 32
D_FAIL, D_CINIT, D_LN, D_FINIT, D_HCNT = 16, 36, 40, 44, 48

def gen_ln(a, s_tile, lds_base):
    T = S_T
    a(f"s_lshl_b32 s{T}, s{s_tile}, 14\ns_lshl_b32 s{T+1}, s{S_W}, 8\ns_add_u32 s{T+1}, s{T+1}, s{T}")
    a(f"v_lshlrev_b32 v65, 10, v1\nv_lshl_add_u32 v65, v2, 4, v65\nv_add_u32 v65, s{T+1}, v65")
    for j in range(4): a(f"global_load_dwordx4 {vr(48+4*j,4)}, v65, {sr(S_X,2)} offset:{64*j}")
    a(f"v_lshlrev_b32 v66, 2, v1\nv_add_u32 v66, {lds_base}, v66\ns_lshl_b32 s{T+1}, s{S_W}, 6\nv_add_u32 v67, s{T+1}, v66")
    a("s_waitcnt vmcnt(0)")
    for i in range(16):
        a(f"v_lshlrev_b32 v{16+2*i}, 16, v{48+i}\nv_and_b32 v{17+2*i}, 0xffff0000, v{48+i}")
    a("v_add_f32 v68, v16, v17")
    for i in range(2, 32): a(f"v_add_f32 v68, v68, v{16+i}")
    xlane_sum_g(a, "v68", "v69")
    a("ds_write_b32 v67, v68\ns_waitcnt lgkmcnt(0)\ns_barrier")
    for j in range(4): a(f"ds_read_b32 v{70+j}, v66 offset:{64*j}")
    a("s_waitcnt lgkmcnt(0)\nv_add_f32 v70, v70, v71\nv_add_f32 v72, v72, v73\nv_add_f32 v70, v70, v72")
    a(f"v_mul_f32 v70, {hex(f32bits(1/512))}, v70")
    a("v_sub_f32 v69, v16, v70\nv_mul_f32 v68, v69, v69")
    for i in range(1, 32): a(f"v_sub_f32 v69, v{16+i}, v70\nv_fmac_f32 v68, v69, v69")
    xlane_sum_g(a, "v68", "v69")
    a("ds_write_b32 v67, v68 offset:256\ns_waitcnt lgkmcnt(0)\ns_barrier")
    for j in range(4): a(f"ds_read_b32 v{71+j}, v66 offset:{256+64*j}")
    a("s_waitcnt lgkmcnt(0)\nv_add_f32 v71, v71, v72\nv_add_f32 v73, v73, v74\nv_add_f32 v71, v71, v73")
    a(f"v_mul_f32 v71, {hex(f32bits(1/512))}, v71")
    rnd_bf16(a, "v71", "v71")
    a(f"v_add_f32 v71, {hex(f32bits(1e-5))}, v71"); rnd_bf16(a, "v71", "v71")
    a("v_sqrt_f32 v71, v71"); rnd_bf16(a, "v71", "v71")
    a("v_rcp_f32 v72, v71")
    rnd_bf16(a, "v70", "v70")
    for i in range(16):
        x0, x1 = 16 + 2 * i, 17 + 2 * i
        a(f"v_sub_f32 v{x0}, v{x0}, v70\nv_sub_f32 v{x1}, v{x1}, v70\nv_cvt_pk_bf16_f32 v68, v{x0}, v{x1}")
        a(f"v_lshlrev_b32 v{x0}, 16, v68\nv_and_b32 v{x1}, 0xffff0000, v68")
        for x in (x0, x1):
            a(f"v_mul_f32 v68, v{x}, v72\nv_fma_f32 v69, -v68, v71, v{x}\nv_fma_f32 v{x}, v69, v72, v68")
        a(f"v_cvt_pk_bf16_f32 v{48+i}, v{x0}, v{x1}")
    a(f"s_lshl_b32 s{T+1}, s{S_W}, 12\ns_add_u32 s{T+1}, s{T+1}, s{T}\nv_lshlrev_b32 v65, 4, v0\nv_add_u32 v65, s{T+1}, v65")
    for j in range(4): a(f"global_store_dwordx4 v65, {vr(48+4*j,4)}, {sr(S_WS,2)} offset:{1024*j} sc1")

def dbg_add_wg(a, idx, vt0, vt1):
    L = a.lab("da")
    a(f"s_waitcnt vmcnt(0)\ns_barrier\ns_cmp_lg_u32 s{S_W}, 0\ns_cbranch_scc1 {L}")
    a(f"v_mov_b32 {vt0}, {idx*4}\nv_mov_b32 {vt1}, 1\ns_mov_b64 exec, 1\nglobal_atomic_add {vt0}, {vt1}, {sr(S_DBG,2)} sc1\ns_mov_b64 exec, -1\n{L}:")

def dbg_wait(a, idx, val, vt0, vt1, sleep=1):
    a(f"v_mov_b32 {vt0}, {idx*4}")
    if val > 64:
        a(f"s_mov_b32 s{S_T}, {val}"); val = f"s{S_T}"
    wait_flag(a, vt0, S_DBG, val, vt1, sleep=sleep)

def load_w_lds(a, chunks, vsrc, vrd, tmp, hooks=None, mid=None, fl=""):
    T = S_T
    def issue(ci):
        srd, row0, _ = chunks[ci]
        a(f"s_lshl_b32 s{T}, s{S_W}, 14\ns_add_u32 m0, s{T}, {hex((ci & 1) * 65536)}\ns_mov_b32 s{S_SOFF}, {hex(row0 * 8192)}")
        for k in range(16):
            a(f"buffer_load_dwordx4 {vsrc}, {sr(srd,4)}, s{S_SOFF} offen {fl} lds")
            if k < 15: a(f"s_add_u32 m0, m0, 1024\ns_add_u32 s{S_SOFF}, s{S_SOFF}, {4*8192}")
    n = len(chunks)
    issue(0); issue(1)
    if mid: mid()
    D = 12
    for ci in range(n):
        a(f"s_waitcnt vmcnt({(16 + (12 if (mid and ci == 0) else 0)) if ci + 1 < n else 0})\ns_barrier")
        items = chunks[ci][2]
        lg = Cnt(a, "lgkmcnt", 15)
        def rd(i):
            it = items[i]
            a(f"ds_read2st64_b32 {vr(tmp+4+2*(i%D),2)}, v{it[0] + (ci & 1)} offset0:{it[1]} offset1:{it[2]}"); lg.issue(i)
        for i in range(min(D, len(items))): rd(i)
        for i, it in enumerate(items):
            lg.wait(i)
            b = tmp + 4 + 2 * (i % D)
            for hh, sel in ((0, S_PLO), (1, S_PHI)):
                d = it[3][hh]
                if d[0] == 'v': a(f"v_perm_b32 {d}, v{b+1}, v{b}, s{sel}")
                else: a(f"v_perm_b32 v{tmp+hh}, v{b+1}, v{b}, s{sel}\nv_accvgpr_write_b32 {d}, v{tmp+hh}")
            if i + D < len(items): rd(i + D)
        if ci + 2 < n:
            a("s_barrier"); issue(ci + 2)
        if hooks and ci in hooks: hooks[ci]()
```

```python
import sys, math, struct
from asmlib import Asm
from layout import *

NAME = "recurrent_scan__memory_aug_recurrent_mem_tr__glu_gated_bilinear__prompt"
SPIN_MAX = 0x400000

def f32bits(x): return struct.unpack('<I', struct.pack('<f', x))[0]
def vr(b, n=1): return "v%d" % b if n == 1 else "v[%d:%d]" % (b, b + n - 1)
def ar(b, n=1): return "a%d" % b if n == 1 else "a[%d:%d]" % (b, b + n - 1)
def sr(b, n=1): return "s%d" % b if n == 1 else "s[%d:%d]" % (b, b + n - 1)

class Cnt:
    def __init__(self, a, name, mx): self.a = a; self.name = name; self.q = []; self.mx = mx
    def issue(self, tag): self.q.append(tag)
    def wait(self, tag):
        if tag not in self.q: return
        idx = max(i for i, t in enumerate(self.q) if t == tag)
        n = len(self.q) - 1 - idx
        assert n <= self.mx, (self.name, n)
        self.a("s_waitcnt %s(%d)" % (self.name, n))
        self.q = self.q[idx + 1:]
    def waitall(self):
        self.a("s_waitcnt %s(0)" % self.name); self.q = []
    def reset(self): self.q = []

def kd(name, vgpr, sgpr, accum):
    return f"""
.section .rodata,"a"
.p2align 6
.amdhsa_kernel {name}
  .amdhsa_next_free_vgpr {vgpr}
  .amdhsa_next_free_sgpr {sgpr}
  .amdhsa_accum_offset {accum}
  .amdhsa_group_segment_fixed_size 0
  .amdhsa_kernarg_size 112
  .amdhsa_user_sgpr_count 2
  .amdhsa_user_sgpr_kernarg_segment_ptr 1
  .amdhsa_system_sgpr_workgroup_id_x 1
  .amdhsa_float_denorm_mode_32 3
.end_amdhsa_kernel
.text
"""

def head(a, name):
    a(f".globl {name}\n.p2align 8\n.type {name},@function\n{name}:")

def rnd_bf16(a, dst, src):
    a(f"v_cvt_pk_bf16_f32 {dst}, {src}, {src}\nv_and_b32 {dst}, 0xffff0000, {dst}")

def xlane_sum_g(a, v, t, op="v_add_f32"):
    a(f"v_mov_b32 {t}, {v}\nv_permlane16_swap_b32 {v}, {t}\n{op} {v}, {v}, {t}")
    a(f"v_mov_b32 {t}, {v}\nv_permlane32_swap_b32 {v}, {t}\n{op} {v}, {v}, {t}")

def gen_prep(a):
    head(a, "prep_kernel")
    a("s_cmp_ge_u32 s2, 256\ns_cbranch_scc1 L_prep_end")
    a("s_load_dwordx4 s[4:7], s[0:1], 0\ns_load_dwordx2 s[8:9], s[0:1], 104")
    a("v_and_b32 v1, 63, v0\nv_lshrrev_b32 v2, 6, v0\nv_and_b32 v3, 15, v0\nv_bfe_u32 v4, v0, 4, 2")
    a("s_cmp_ge_u32 s2, 128\ns_cbranch_scc1 L_prep_init")
    a("s_lshl_b32 s10, s2, 14")
    a("v_lshlrev_b32 v5, 10, v3\nv_lshl_add_u32 v5, v2, 8, v5\nv_lshl_add_u32 v5, v4, 4, v5\nv_add_u32 v5, s10, v5")
    a("s_waitcnt lgkmcnt(0)")
    for j in range(4): a(f"global_load_dwordx4 {vr(48+4*j,4)}, v5, s[4:5] offset:{64*j}")
    a("v_lshlrev_b32 v6, 2, v3\nv_lshl_add_u32 v7, v2, 6, v6")
    a("s_waitcnt vmcnt(0)")
    for i in range(16):
        a(f"v_lshlrev_b32 v{16+2*i}, 16, v{48+i}\nv_and_b32 v{17+2*i}, 0xffff0000, v{48+i}")
    a("v_add_f32 v8, v16, v17")
    for i in range(2, 32): a(f"v_add_f32 v8, v8, v{16+i}")
    xlane_sum_g(a, "v8", "v9")
    a("ds_write_b32 v7, v8\ns_waitcnt lgkmcnt(0)\ns_barrier")
    for j in range(4): a(f"ds_read_b32 v{10+j}, v6 offset:{64*j}")
    a("s_waitcnt lgkmcnt(0)\nv_add_f32 v10, v10, v11\nv_add_f32 v12, v12, v13\nv_add_f32 v10, v10, v12")
    a(f"v_mul_f32 v10, {hex(f32bits(1/512))}, v10")
    a("v_sub_f32 v9, v16, v10\nv_mul_f32 v8, v9, v9")
    for i in range(1, 32): a(f"v_sub_f32 v9, v{16+i}, v10\nv_fmac_f32 v8, v9, v9")
    xlane_sum_g(a, "v8", "v9")
    a("ds_write_b32 v7, v8 offset:256\ns_waitcnt lgkmcnt(0)\ns_barrier")
    for j in range(4): a(f"ds_read_b32 v{11+j}, v6 offset:{256+64*j}")
    a("s_waitcnt lgkmcnt(0)\nv_add_f32 v11, v11, v12\nv_add_f32 v13, v13, v14\nv_add_f32 v11, v11, v13")
    a(f"v_mul_f32 v11, {hex(f32bits(1/512))}, v11")
    rnd_bf16(a, "v11", "v11")
    a(f"v_add_f32 v11, {hex(f32bits(1e-5))}, v11"); rnd_bf16(a, "v11", "v11")
    a("v_sqrt_f32 v11, v11"); rnd_bf16(a, "v11", "v11")
    a("v_rcp_f32 v12, v11")
    rnd_bf16(a, "v10", "v10")
    for i in range(16):
        x0, x1 = 16 + 2 * i, 17 + 2 * i
        a(f"v_sub_f32 v{x0}, v{x0}, v10\nv_sub_f32 v{x1}, v{x1}, v10\nv_cvt_pk_bf16_f32 v8, v{x0}, v{x1}")
        a(f"v_lshlrev_b32 v{x0}, 16, v8\nv_and_b32 v{x1}, 0xffff0000, v8")
        for x in (x0, x1):
            a(f"v_mul_f32 v8, v{x}, v12\nv_fma_f32 v9, -v8, v11, v{x}\nv_fma_f32 v{x}, v9, v12, v8")
        a(f"v_cvt_pk_bf16_f32 v{48+i}, v{x0}, v{x1}")
    a("v_lshlrev_b32 v5, 4, v1\nv_lshl_add_u32 v5, v2, 12, v5\nv_add_u32 v5, s10, v5")
    for j in range(4): a(f"global_store_dwordx4 v5, {vr(48+4*j,4)}, s[8:9] offset:{1024*j}")
    a("s_endpgm")
    a("L_prep_init:")
    a("s_sub_u32 s10, s2, 128\ns_lshl_b32 s11, s10, 12\nv_lshlrev_b32 v5, 4, v0\nv_add_u32 v5, s11, v5")
    a("v_mov_b32 v8, 0x02020202\nv_mov_b32 v9, v8\nv_mov_b32 v10, v8\nv_mov_b32 v11, v8")
    a("v_mov_b32 v12, -1\nv_mov_b32 v13, -1\nv_mov_b32 v14, -1\nv_mov_b32 v15, -1")
    a("v_mov_b32 v16, 0\nv_mov_b32 v17, 0\nv_mov_b32 v18, 0\nv_mov_b32 v19, 0")
    a(f"v_add_u32 v6, {hex(PBUF)}, v5\nv_add_u32 v7, {hex(MBUF+8192)}, v5\nv_add_u32 v20, {hex(FLAGS)}, v5")
    a("s_waitcnt lgkmcnt(0)")
    a("global_store_dwordx4 v6, v[12:15], s[8:9]\nglobal_store_dwordx4 v7, v[12:15], s[8:9]\nv_add_u32 v6, 0x80000, v6\nglobal_store_dwordx4 v6, v[12:15], s[8:9]")
    a(f"s_cmp_ge_u32 s10, {FLAGS_SIZE//4096}\ns_cbranch_scc1 L_prep_nf")
    a("global_store_dwordx4 v20, v[16:19], s[8:9]")
    a("L_prep_nf:")
    a("s_cmp_lt_u32 s10, 126\ns_cbranch_scc1 L_prep_end")
    a("s_sub_u32 s11, s10, 126\ns_lshl_b32 s11, s11, 2\nv_add_u32 v21, s11, v2")
    a("v_and_b32 v22, 1, v21\nv_lshlrev_b32 v22, 8, v22\nv_lshrrev_b32 v23, 1, v4\nv_lshl_add_u32 v22, v23, 7, v22")
    a("v_lshrrev_b32 v23, 3, v3\nv_lshl_add_u32 v22, v23, 6, v22\nv_lshrrev_b32 v23, 1, v21\nv_lshl_add_u32 v22, v23, 1, v22")
    a("v_and_b32 v23, 1, v4\nv_add_u32 v22, v22, v23\nv_and_b32 v23, 7, v3\nv_lshl_add_u32 v22, v23, 9, v22\nv_lshlrev_b32 v22, 1, v22")
    for c in range(8): a(f"global_load_ushort v{24+c}, v22, s[6:7] offset:{16*c}")
    a("s_waitcnt vmcnt(0)")
    for c in range(4): a(f"v_lshl_or_b32 v{32+c}, v{25+2*c}, 16, v{24+2*c}\nv_min_u32 v{32+c}, 0xfffffffe, v{32+c}")
    a(f"v_lshlrev_b32 v22, 10, v21\nv_lshl_add_u32 v22, v1, 4, v22\nv_add_u32 v22, {hex(MBUF)}, v22")
    a("global_store_dwordx4 v22, v[32:35], s[8:9]")
    a("L_prep_end:\ns_endpgm")

S_X, S_WQ, S_WK, S_WV, S_WO = 4, 8, 10, 12, 14
S_WG, S_WU, S_WD, S_OUT, S_DBG, S_WS = 16, 18, 20, 22, 24, 26
S_W, S_RANK, S_XCC, S_WID = 28, 29, 30, 31
S_SRD0, S_SRD1, S_SRD2, S_SRD3 = 48, 52, 56, 60
S_SOFF = 36
S_PLO, S_PHI = 37, 38
S_SPIN = 39
S_T = 40

def set_srd(a, srd, base, nbytes):
    a(f"s_mov_b32 s{srd}, s{base}\ns_and_b32 s{srd+1}, s{base+1}, 0xffff\ns_mov_b32 s{srd+2}, {hex(nbytes)}\ns_mov_b32 s{srd+3}, 0x20000")

def load_pairs(a, items, tmp, depth, width=1, fl=""):
    cur = [None]
    sfx = {1: "dword", 4: "dwordx4"}[width]
    def ld(dst, srd, voff, off):
        if cur[0] is None or not (0 <= off - cur[0] <= 4095):
            cur[0] = off; a(f"s_mov_b32 s{S_SOFF}, {hex(off)}")
        o = off - cur[0]
        a(f"buffer_load_{sfx} {vr(dst,width)}, {voff}, {sr(srd,4)}, s{S_SOFF} offen" + (f" offset:{o}" if o else "") + " " + fl)
    n = len(items)
    assert 2 * depth <= 62
    def slot(i): return tmp + 4 + (i % depth) * 2 * width
    def issue(i):
        it = items[i]; b = slot(i)
        ld(b, it[0], it[1], it[2]); ld(b + width, it[0], it[1], it[3])
    for i in range(min(depth, n)): issue(i)
    for i in range(n):
        outstanding = min(depth, n - i)
        a(f"s_waitcnt vmcnt({2*(outstanding-1)})")
        b = slot(i)
        dests, post = items[i][4], items[i][5]
        for x in range(width):
            for hh, sel in ((0, S_PLO), (1, S_PHI)):
                d = dests[2 * x + hh]
                if d[0] == 'v': a(f"v_perm_b32 {d}, v{b+width+x}, v{b+x}, s{sel}")
                else: a(f"v_perm_b32 v{tmp+hh}, v{b+width+x}, v{b+x}, s{sel}\nv_accvgpr_write_b32 {d}, v{tmp+hh}")
        if post: post()
        if i + depth < n: issue(i + depth)

def spin_check(a, fail="L_fail"):
    a(f"s_add_u32 s{S_SPIN}, s{S_SPIN}, 1\ns_cmp_gt_u32 s{S_SPIN}, {hex(SPIN_MAX)}\ns_cbranch_scc1 {fail}")

def wait_flag(a, voff, base, val, vtmp, cmp="v_cmp_ne_u32", sleep=0, width=1):
    L = a.lab("wf")
    a(f"{L}:\nglobal_load_dword {vtmp}, {voff}, {sr(base,2)} sc1")
    spin_check(a)
    if sleep: a(f"s_sleep {sleep}")
    a(f"s_waitcnt vmcnt(0)\n{cmp} vcc, {val}, {vtmp}\ns_cbranch_vccnz {L}")


def rt_stamp(a, opts, idx, who):
    if opts.get('dbgstamp'):
        k = opts['dbgstamp'].get((getattr(a, 'role', 'x'), idx))
        if k is None: return
        L = a.lab("ds")
        a(f"s_cmp_lg_u32 s{S_W}, 0\ns_cbranch_scc1 {L}\ns_and_b32 s32, s{S_RANK}, 7\ns_cmp_lg_u32 s32, 0\ns_cbranch_scc1 {L}")
        if idx == 6: a(f"s_cmp_lt_u32 s80, 60\ns_cbranch_scc1 {L}")
        a(f"s_memrealtime s[32:33]\ns_waitcnt lgkmcnt(0)\nv_mov_b32 v126, {4*(8+k)}\nv_mov_b32 v127, s32\ns_mov_b64 exec, 1\nglobal_atomic_umax v126, v127, {sr(S_DBG,2)} sc1")
        if k == 1: a(f"v_not_b32 v127, v127\nv_mov_b32 v126, 32\nglobal_atomic_umax v126, v127, {sr(S_DBG,2)} sc1")
        a(f"s_mov_b64 exec, -1\n{L}:")
        return
    if not opts.get('prof'): return
    a(f"s_memrealtime s[32:33]\ns_lshl_b32 s34, s{who}, 8\ns_lshl_b32 s35, s{S_W}, 6\ns_add_u32 s34, s34, s35\ns_add_u32 s34, s34, {hex(PROF + idx*4)}\ns_waitcnt lgkmcnt(0)")
    a(f"v_mov_b32 v126, s34\nv_mov_b32 v127, s32\nglobal_store_dword v126, v127, {sr(S_WS,2)}" + ("" if idx == 0 else "\ns_waitcnt vmcnt(0)"))

D_RANK0 = 32
D_FAIL, D_CINIT, D_LN, D_FINIT, D_HCNT = 16, 36, 40, 44, 48

def gen_ln(a, s_tile, lds_base):
    T = S_T
    a(f"s_lshl_b32 s{T}, s{s_tile}, 14\ns_lshl_b32 s{T+1}, s{S_W}, 8\ns_add_u32 s{T+1}, s{T+1}, s{T}")
    a(f"v_lshlrev_b32 v65, 10, v1\nv_lshl_add_u32 v65, v2, 4, v65\nv_add_u32 v65, s{T+1}, v65")
    for j in range(4): a(f"global_load_dwordx4 {vr(48+4*j,4)}, v65, {sr(S_X,2)} offset:{64*j}")
    a(f"v_lshlrev_b32 v66, 2, v1\nv_add_u32 v66, {lds_base}, v66\ns_lshl_b32 s{T+1}, s{S_W}, 6\nv_add_u32 v67, s{T+1}, v66")
    a("s_waitcnt vmcnt(0)")
    for i in range(16):
        a(f"v_lshlrev_b32 v{16+2*i}, 16, v{48+i}\nv_and_b32 v{17+2*i}, 0xffff0000, v{48+i}")
    a("v_add_f32 v68, v16, v17")
    for i in range(2, 32): a(f"v_add_f32 v68, v68, v{16+i}")
    xlane_sum_g(a, "v68", "v69")
    a("ds_write_b32 v67, v68\ns_waitcnt lgkmcnt(0)\ns_barrier")
    for j in range(4): a(f"ds_read_b32 v{70+j}, v66 offset:{64*j}")
    a("s_waitcnt lgkmcnt(0)\nv_add_f32 v70, v70, v71\nv_add_f32 v72, v72, v73\nv_add_f32 v70, v70, v72")
    a(f"v_mul_f32 v70, {hex(f32bits(1/512))}, v70")
    a("v_sub_f32 v69, v16, v70\nv_mul_f32 v68, v69, v69")
    for i in range(1, 32): a(f"v_sub_f32 v69, v{16+i}, v70\nv_fmac_f32 v68, v69, v69")
    xlane_sum_g(a, "v68", "v69")
    a("ds_write_b32 v67, v68 offset:256\ns_waitcnt lgkmcnt(0)\ns_barrier")
    for j in range(4): a(f"ds_read_b32 v{71+j}, v66 offset:{256+64*j}")
    a("s_waitcnt lgkmcnt(0)\nv_add_f32 v71, v71, v72\nv_add_f32 v73, v73, v74\nv_add_f32 v71, v71, v73")
    a(f"v_mul_f32 v71, {hex(f32bits(1/512))}, v71")
    rnd_bf16(a, "v71", "v71")
    a(f"v_add_f32 v71, {hex(f32bits(1e-5))}, v71"); rnd_bf16(a, "v71", "v71")
    a("v_sqrt_f32 v71, v71"); rnd_bf16(a, "v71", "v71")
    a("v_rcp_f32 v72, v71")
    rnd_bf16(a, "v70", "v70")
    for i in range(16):
        x0, x1 = 16 + 2 * i, 17 + 2 * i
        a(f"v_sub_f32 v{x0}, v{x0}, v70\nv_sub_f32 v{x1}, v{x1}, v70\nv_cvt_pk_bf16_f32 v68, v{x0}, v{x1}")
        a(f"v_lshlrev_b32 v{x0}, 16, v68\nv_and_b32 v{x1}, 0xffff0000, v68")
        for x in (x0, x1):
            a(f"v_mul_f32 v68, v{x}, v72\nv_fma_f32 v69, -v68, v71, v{x}\nv_fma_f32 v{x}, v69, v72, v68")
        a(f"v_cvt_pk_bf16_f32 v{48+i}, v{x0}, v{x1}")
    a(f"s_lshl_b32 s{T+1}, s{S_W}, 12\ns_add_u32 s{T+1}, s{T+1}, s{T}\nv_lshlrev_b32 v65, 4, v0\nv_add_u32 v65, s{T+1}, v65")
    for j in range(4): a(f"global_store_dwordx4 v65, {vr(48+4*j,4)}, {sr(S_WS,2)} offset:{1024*j} sc1")

def dbg_add_wg(a, idx, vt0, vt1):
    L = a.lab("da")
    a(f"s_waitcnt vmcnt(0)\ns_barrier\ns_cmp_lg_u32 s{S_W}, 0\ns_cbranch_scc1 {L}")
    a(f"v_mov_b32 {vt0}, {idx*4}\nv_mov_b32 {vt1}, 1\ns_mov_b64 exec, 1\nglobal_atomic_add {vt0}, {vt1}, {sr(S_DBG,2)} sc1\ns_mov_b64 exec, -1\n{L}:")

def dbg_wait(a, idx, val, vt0, vt1, sleep=1):
    a(f"v_mov_b32 {vt0}, {idx*4}")
    if val > 64:
        a(f"s_mov_b32 s{S_T}, {val}"); val = f"s{S_T}"
    wait_flag(a, vt0, S_DBG, val, vt1, sleep=sleep)

def load_w_lds(a, chunks, vsrc, vrd, tmp, hooks=None, mid=None, fl=""):
    T = S_T
    def issue(ci):
        srd, row0, _ = chunks[ci]
        a(f"s_lshl_b32 s{T}, s{S_W}, 14\ns_add_u32 m0, s{T}, {hex((ci & 1) * 65536)}\ns_mov_b32 s{S_SOFF}, {hex(row0 * 8192)}")
        for k in range(16):
            a(f"buffer_load_dwordx4 {vsrc}, {sr(srd,4)}, s{S_SOFF} offen {fl} lds")
            if k < 15: a(f"s_add_u32 m0, m0, 1024\ns_add_u32 s{S_SOFF}, s{S_SOFF}, {4*8192}")
    n = len(chunks)
    issue(0); issue(1)
    if mid: mid()
    D = 12
    for ci in range(n):
        a(f"s_waitcnt vmcnt({(16 + (12 if (mid and ci == 0) else 0)) if ci + 1 < n else 0})\ns_barrier")
        items = chunks[ci][2]
        lg = Cnt(a, "lgkmcnt", 15)
        def rd(i):
            it = items[i]
            a(f"ds_read2st64_b32 {vr(tmp+4+2*(i%D),2)}, v{it[0] + (ci & 1)} offset0:{it[1]} offset1:{it[2]}"); lg.issue(i)
        for i in range(min(D, len(items))): rd(i)
        for i, it in enumerate(items):
            lg.wait(i)
            b = tmp + 4 + 2 * (i % D)
            for hh, sel in ((0, S_PLO), (1, S_PHI)):
                d = it[3][hh]
                if d[0] == 'v': a(f"v_perm_b32 {d}, v{b+1}, v{b}, s{sel}")
                else: a(f"v_perm_b32 v{tmp+hh}, v{b+1}, v{b}, s{sel}\nv_accvgpr_write_b32 {d}, v{tmp+hh}")
            if i + D < len(items): rd(i + D)
        if ci + 2 < n:
            a("s_barrier"); issue(ci + 2)
        if hooks and ci in hooks: hooks[ci]()

def code_prefetch(a, lab0, lab1, nbytes_max, vtmp, vdst, sp=34):
    L = a.lab("pc")
    a(f"s_getpc_b64 s[{sp}:{sp+1}]\n{L}:\ns_add_u32 s{sp}, s{sp}, {lab0}-{L}\ns_addc_u32 s{sp+1}, s{sp+1}, 0")
    a(f"s_lshl_b32 s{S_T}, s{S_W}, 12\nv_mbcnt_lo_u32_b32 {vtmp}, -1, 0\nv_mbcnt_hi_u32_b32 {vtmp}, -1, {vtmp}\nv_lshlrev_b32 {vtmp}, 6, {vtmp}\nv_add_u32 {vtmp}, s{S_T}, {vtmp}")
    n = (nbytes_max + 16383) // 16384
    for k in range(n):
        a(f"v_min_u32 {vdst}, {lab1}-{lab0}-4, {vtmp}\nglobal_load_dword {vdst}, {vdst}, s[{sp}:{sp+1}]")
        if k < n - 1: a(f"v_add_u32 {vtmp}, 16384, {vtmp}")
    return n
```

```python
from common import *

LOG2E = 1.4426950408889634
SCALE = 128 ** -0.5

NSP = 17
L_MB = 4 * NSP * 2048
L_TQ = L_MB + 8192
L_KX = L_TQ + 4096
L_SEL = L_KX + 8192
assert L_SEL + 1024 <= 163840

V_PFD, V_IDX, V_PST, V_MST, V_WL, V_TW, V_TR, V_LW, V_MBR, V_PF, V_PFS, V_FL, V_ONE, MX, X0, X1 = range(16)
MEM = 16
AQ, AK, AV = 48, 56, 64
WIN = 72
VX = 104
QOP = 112
KXS = 128
WREG0 = 136

S_S = 64
S_P, S_PL, S_PR, S_PB = 66, 68, 70, 72
S_M = 74
S_MS = 76
S_KF, S_VF, S_KM = 78, 80, 82
S_C = 84
S_ONES, S_HALF = 86, 98
S_RING, S_HOFF = 100, 101
S_EM = 44

def frag_table():
    lds = [('q', 0, 0), ('q', 1, 0), ('q', 0, 1), ('q', 1, 1),
           ('k', 0, 2), ('k', 1, 2), ('k', 0, 3), ('k', 1, 3)] + [('o', j, x) for j in (2, 3) for x in range(4)] + [('o', 1, 3)]
    assert len(lds) == NSP
    loc = {f: ('l', i) for i, f in enumerate(lds)}
    regs = [('a', 8 * i) for i in range(32)] + [('v', WREG0 + 8 * i) for i in range(15)]
    allf = [(m, t, u) for m in 'qkv' for u in range(8) for t in range(2)] + [('o', j, x) for j in range(4) for x in range(4)]
    for f in allf:
        if f not in loc: loc[f] = regs.pop(0)
    assert not regs
    return loc

def gen_chain(a, opts):
    T = S_T
    loc = frag_table()
    H = S_RANK
    st = opts.get('init_st', 'sc1')
    prof = opts.get('cyc')
    LN = 24
    a(f"v_mov_b32 v{LN}, v0\nv_and_b32 v16, 15, v{LN}\nv_lshrrev_b32 v17, 4, v{LN}\nv_lshrrev_b32 v18, 5, v{LN}\nv_and_b32 v19, 1, v17\nv_lshlrev_b32 v23, 4, v{LN}\nv_and_b32 v21, 7, v{LN}")
    a(f"v_lshrrev_b32 v20, 3, v16\nv_lshlrev_b32 v20, 6, v20\nv_lshl_add_u32 v20, v18, 7, v20\nv_add_u32 v20, v20, v19\nv_and_b32 v22, 7, v16\nv_lshl_add_u32 v20, v22, 9, v20\ns_lshl_b32 s{T}, s{S_W}, 1\nv_add_u32 v20, s{T}, v20\nv_lshlrev_b32 v20, 1, v20")
    for uu in range(2):
        for c in range(8): a(f"global_load_ushort v{96+8*uu+c}, v20, s[6:7] offset:{512*uu+16*c}")
    set_srd(a, S_SRD0, S_WQ, 512 * 8192); set_srd(a, S_SRD1, S_WK, 512 * 8192); set_srd(a, S_SRD2, S_WV, 512 * 8192); set_srd(a, S_SRD3, S_WO, 4096 * 1024)
    VO = 112
    a(f"s_lshl_b32 s{T}, s{H}, 8\ns_lshl_b32 s{T+1}, s{S_W}, 19\ns_add_u32 s{T}, s{T}, s{T+1}\nv_lshlrev_b32 v20, 13, v17\nv_lshl_add_u32 v20, v16, 4, v20\nv_add_u32 v{VO}, s{T}, v20")
    a(f"v_lshlrev_b32 v20, 5, v19\nv_add_u32 v20, v20, v18\nv_lshlrev_b32 v20, 8, v20\nv_lshl_add_u32 v20, v16, 2, v20\ns_lshl_b32 s{T}, s{S_W}, 6")
    for jp in range(4):
        a(f"s_xor_b32 s{T+1}, s{S_W}, {jp}\ns_lshl_b32 s{T+1}, s{T+1}, 9\ns_add_u32 s{T+1}, s{T+1}, s{T}\nv_add_u32 v{VO+2+2*jp}, s{T+1}, v20\nv_add_u32 v{VO+3+2*jp}, 0x10000, v{VO+2+2*jp}")
    a(f"v_lshlrev_b32 v20, 12, v17\nv_lshl_add_u32 v20, v16, 4, v20\ns_lshl_b32 s{T}, s{H}, 17\ns_lshl_b32 s{T+1}, s{S_W}, 8\ns_add_u32 s{T}, s{T}, s{T+1}\nv_add_u32 v{VO+1}, s{T}, v20")
    def mid():
        a(f"v_mov_b32 v20, 0x4444\nv_mov_b32 v22, 0xeeee\nv_cmp_gt_u32 vcc, 8, v16\nv_cndmask_b32 v{V_IDX}, v22, v20, vcc")
        a(f"v_lshrrev_b32 v20, 3, v16\nv_lshlrev_b32 v20, 1, v20\nv_lshl_add_u32 v20, v18, 2, v20\nv_add_u32 v20, v20, v19\nv_lshlrev_b32 v20, 13, v20\nv_lshl_add_u32 v20, v21, 3, v20")
        a(f"s_lshl_b32 s{T}, s{H}, 6\ns_lshl_b32 s{T+1}, s{S_W}, 16\ns_add_u32 s{T+1}, s{T}, s{T+1}\nv_add_u32 v{V_PST}, s{T+1}, v20")
        a(f"v_and_b32 v20, 3, v16\nv_lshlrev_b32 v20, 4, v20\nv_lshl_add_u32 v20, v19, 3, v20\nv_lshl_add_u32 v20, v18, 2, v20")
        a(f"s_lshl_b32 s{T+1}, s{S_W}, 11\ns_add_u32 s{T}, s{T}, s{T+1}\nv_add_u32 v{V_MST}, s{T}, v20")
        a(f"v_add_u32 v{V_MBR}, {hex(L_MB)}, v23\nv_add_u32 v{V_LW}, s{T+1}, v{V_MBR}")
        a(f"v_lshrrev_b32 v20, 1, v21\nv_and_b32 v22, 1, v16\nv_lshlrev_b32 v22, 4, v22\nv_mov_b32 v25, 0x3f80\nv_lshlrev_b32 v25, v22, v25")
        for d in range(4): a(f"v_cmp_eq_u32 vcc, {d}, v20\nv_cndmask_b32 v{28+d}, 0, v25, vcc")
        a(f"ds_write_b128 v{V_MBR}, v[28:31] offset:{L_SEL-L_MB}")
        a(f"s_mul_i32 s{T}, s{S_W}, {NSP*2048}\nv_add_u32 v{V_WL}, s{T}, v23")
        a(f"v_lshlrev_b32 v20, 5, v16\nv_lshl_add_u32 v20, v18, 4, v20\nv_lshl_add_u32 v20, v19, 3, v20\ns_lshl_b32 s{T}, s{S_W}, 9\ns_add_u32 s{T+1}, s{T}, {hex(L_TQ)}\nv_add_u32 v{V_TW}, s{T+1}, v20")
        a(f"v_lshrrev_b32 v20, 2, v16\nv_lshl_add_u32 v20, v17, 3, v20\nv_lshlrev_b32 v20, 4, v20\nv_and_b32 v22, 1, v16\nv_lshl_add_u32 v20, v22, 3, v20\nv_add_u32 v{V_TR}, {hex(L_TQ)}, v20")
        a(f"s_lshl_b32 s{T}, s{H}, 2\ns_add_u32 s{T}, s{T}, s{S_W}\ns_lshl_b32 s{T+1}, s{T}, 6\ns_add_u32 s{T+1}, s{T+1}, {hex(MBUF+8192)}\nv_mov_b32 v20, s{T+1}\nv_mov_b32 v21, 0x2000")
        a(f"s_lshl_b32 s{T+1}, s{T}, 11\ns_add_u32 s{T+1}, s{T+1}, {hex(VF - 0x40000)}\nv_lshlrev_b32 v{V_PF}, 6, v{LN}\nv_add_u32 v{V_PF}, s{T+1}, v{V_PF}\nv_mov_b32 v{V_PFS}, 0x40000")
        a(f"v_cmp_eq_u32 vcc, 2, v17\nv_cndmask_b32 v{V_PF}, v{V_PF}, v20, vcc\nv_cndmask_b32 v{V_PFS}, v{V_PFS}, v21, vcc")
        a(f"s_lshl_b32 s{T+1}, s{H}, 8\ns_add_u32 s{T+1}, s{T+1}, {hex(KVFLAG)}\nv_mov_b32 v22, s{T+1}\nv_mov_b32 v21, 4\nv_cmp_eq_u32 vcc, 3, v17\nv_cndmask_b32 v{V_PF}, v{V_PF}, v22, vcc\nv_cndmask_b32 v{V_PFS}, v{V_PFS}, v21, vcc")
        a(f"s_mul_i32 s{T}, s{H}, 384\ns_add_u32 s{T}, s{T}, {hex(KMFLAG - 4)}\nv_mov_b32 v{V_FL}, s{T}\nv_mov_b32 v{V_ONE}, 1")
        a(f"s_add_u32 s{S_PB}, s{S_WS}, {hex(PBUF - L_MB)}\ns_addc_u32 s{S_PB+1}, s{S_WS+1}, 0\ns_mov_b32 s{S_RING}, 0xc0000\ns_lshl_b32 s{S_HOFF}, s{H}, 13")
        a(f"s_add_u32 s{S_PL}, s{S_PB}, s{S_HOFF}\ns_addc_u32 s{S_PL+1}, s{S_PB+1}, 0\ns_add_u32 s{S_PL}, s{S_PL}, 0xc0000\ns_addc_u32 s{S_PL+1}, s{S_PL+1}, 0")
        a(f"s_add_u32 s{S_M}, s{S_WS}, {hex(MBUF - L_MB)}\ns_addc_u32 s{S_M+1}, s{S_WS+1}, 0\ns_add_u32 s{S_MS}, s{S_WS}, {hex(MBUF)}\ns_addc_u32 s{S_MS+1}, s{S_WS+1}, 0")
        for pair, base in ((S_KF, KF), (S_VF, VF), (S_KM, KM)):
            a(f"s_add_u32 s{pair}, s{S_WS}, s{S_HOFF}\ns_addc_u32 s{pair+1}, s{S_WS+1}, 0\ns_add_u32 s{pair}, s{pair}, {hex(base - L_MB)}\ns_addc_u32 s{pair+1}, s{pair+1}, 0")
        a(f"s_mov_b32 s{S_C}, {hex(f32bits(SCALE*LOG2E))}\ns_mov_b32 s{S_C+1}, s{S_C}\ns_mov_b32 s{S_ONES}, 0x3f803f80\ns_mov_b32 s{S_ONES+1}, 0x3f803f80\ns_mov_b32 s{S_HALF}, 0x3f003f00\ns_mov_b32 s{S_HALF+1}, 0x3f003f00")
        a(f"s_mov_b32 s{S_EM}, 0x000f000f\ns_mov_b32 s{S_EM+1}, 0x000f000f")
        a("v_mov_b64 v[28:29], -1\nv_mov_b64 v[30:31], -1")
        a(f"v_add_u32 v20, s{S_HOFF}, v{V_LW}")
        for r in range(4):
            a(f"global_store_dwordx4 v20, v[28:31], {sr(S_PB,2)} {st}\nglobal_store_dwordx4 v20, v[28:31], {sr(S_PB,2)} offset:1024 {st}\nv_add_u32 v20, 0x40000, v20")
        a(f"s_lshl_b32 s{T}, s{H}, 14\ns_add_u32 s{T}, s{T}, 8192\nv_add_u32 v20, s{T}, v{V_LW}")
        for r in range(2):
            a(f"global_store_dwordx4 v20, v[28:31], {sr(S_M,2)} {st}\nglobal_store_dwordx4 v20, v[28:31], {sr(S_M,2)} offset:1024 {st}\nv_add_u32 v20, 0x2000, v20")
    HOLD = 48
    def dest(f, m, stg):
        k, b = loc[f]
        return f"v{stg+m}" if k == 'l' else f"{k}{b+m}"
    def flush(f, stg):
        k, b = loc[f]
        if k == 'l':
            a(f"ds_write_b128 v{V_WL}, {vr(stg,4)} offset:{b*2048}\nds_write_b128 v{V_WL}, {vr(stg+4,4)} offset:{b*2048+1024}\ns_waitcnt lgkmcnt(0)")
    chunks = []
    for mat, srd in (('q', S_SRD0), ('k', S_SRD1), ('v', S_SRD2)):
        for half in range(2):
            items = []
            for u in range(half, 8, 2):
                for m in range(8):
                    d = 128 * (m >> 2) + 8 * (8 * (m & 1) + 2 * ((m >> 1) & 1))
                    k0 = 32 * (m >> 2) + 2 * (m & 3)
                    assert d + 256 * half + 2 * (u >> 1) == chain_d(u, k0) and d + 8 + 256 * half + 2 * (u >> 1) == chain_d(u, k0 + 1)
                    hold = lambda f: HOLD + 8 * loc[f][1] if loc[f][0] == 'l' else 0
                    items.append((VO + 2 + 2 * (u >> 1), d, d + 8, [dest((mat, t, u), m, hold((mat, t, u))) for t in range(2)], None))
            chunks.append((srd, 256 * half, items))
    def early():
        a(f"v_mov_b32 v122, {D_FINIT*4}\nglobal_load_dword v123, v122, {sr(S_DBG,2)} sc1")
    def lst(i):
        if opts.get('pro'): a(f"s_memrealtime s[32:33]\ns_waitcnt lgkmcnt(0)\ns_mov_b32 s{88+i}, s32")
    hk = {i: (lambda i=i: lst(i)) for i in range(6)}
    hk[3] = lambda: (early(), lst(3))
    def h0():
        for i in range(8): a(f"v_lshl_or_b32 v{96+i}, v{97+2*i}, 16, v{96+2*i}")
        a(f"ds_write_b128 v{V_LW}, v[96:99]\nds_write_b128 v{V_LW}, v[100:103] offset:1024"); lst(0)
    def h2():
        a(f"s_cmp_lg_u32 s{S_W}, 0\ns_cbranch_scc1 L_noci\nv_mov_b32 v16, {D_CINIT*4}\ns_cmp_eq_u32 s{S_XCC}, 0\ns_cselect_b32 s{T}, 1, 0x10001\nv_mov_b32 v17, s{T}\ns_mov_b64 exec, 1\nglobal_atomic_add v16, v17, {sr(S_DBG,2)} sc1\ns_mov_b64 exec, -1\nL_noci:"); lst(2)
    hk[0] = h0; hk[2] = h2
    wfl = opts.get('wfl', 'nt')
    load_w_lds(a, chunks, f"v{VO}", None, 16, hooks=hk, mid=mid, fl=wfl)
    a("s_barrier")
    for f, (k, b) in loc.items():
        if k == 'l' and f[0] != 'o': flush(f, HOLD + 8 * b)
    a(f"v_cmp_ne_u32 vcc, 1, v123\ns_cbranch_vccz L_fi_ok")
    dbg_wait(a, D_FINIT, 1, "v122", "v123")
    a("L_fi_ok:")
    lst(6)
    a(f"s_lshl_b32 s{T}, s{H}, 8\ns_add_u32 s{T}, s{T}, {hex(KVFLAG)}\nv_mov_b32 v122, s{T}\nglobal_load_dword v123, v122, {sr(S_WS,2)} sc1\ns_mov_b32 s{S_S}, 0")
    def first_dma():
        a(f"global_load_dwordx4 {vr(KXS,4)}, v{V_LW}, {sr(S_KF,2)} sc1\nglobal_load_dwordx4 {vr(KXS+4,4)}, v{V_LW}, {sr(S_KF,2)} offset:1024 sc1")
        a(f"global_load_dword v{V_PFD}, v{V_PF}, {sr(S_WS,2)} sc1\nv_add_u32 v{V_PF}, v{V_PF}, v{V_PFS}")
    def try_dma():
        if opts.get('ipf', 1): code_prefetch(a, "L_entry0", "L_slowmode", 16384, "v126", "v127")
        a(f"s_mov_b32 exec_lo, 0\nglobal_load_dword v125, v{V_PF}, {sr(S_WS,2)} sc1\ns_mov_b32 exec_lo, -1\nv_add_u32 v{V_PF}, v{V_PF}, v{V_PFS}")
        a(f"v_mov_b32 v124, 0x01010101\nv_cmp_ne_u32 vcc, v124, v123\ns_cbranch_vccnz L_nodma0")
        first_dma()
        a(f"s_mov_b32 s{S_S}, 1\nL_nodma0:")
        a(f"v_mov_b32 v120, {D_CINIT*4}\nglobal_load_dword v121, v120, {sr(S_DBG,2)} sc1")
    STG = 88
    items = []
    for x in range(4):
        for mm in range(4):
            e = 32 * x + 16 * (mm >> 1) + 2 * (mm & 1)
            dests = []
            for t8 in range(8):
                j, tp = t8 >> 1, t8 & 1
                m = 4 * (mm >> 1) + 2 * (mm & 1) + tp
                dests.append(dest(('o', j, x), m, STG + 8 * (j - 1) if j >= 1 else 0))
            post = None
            if mm == 3: post = (lambda x=x: (flush(('o', 1, x), STG), flush(('o', 2, x), STG + 8), flush(('o', 3, x), STG + 16)))
            if x == 1 and mm == 2: post = try_dma
            items.append((S_SRD3, f"v{VO+1}", e * 1024, (e + 1) * 1024, dests, post))
    load_pairs(a, items, 16, 8, width=4, fl=opts.get('ofl', ''))
    rt_stamp(a, opts, 1, 96)
    def adv(pair, n): return [f"s_add_u32 s{pair}, s{pair}, {hex(n)}", f"s_addc_u32 s{pair+1}, s{pair+1}, 0"]
    a(f"ds_read_b128 {vr(MEM,4)}, v{V_LW}\nds_read_b128 {vr(MEM+4,4)}, v{V_LW} offset:1024")
    a(f"s_cmp_eq_u32 s{S_S}, 1\ns_cbranch_scc1 L_dma0_done")
    wait_flag(a, "v122", S_WS, "v124", "v123", sleep=1)
    first_dma()
    a("L_dma0_done:")
    lst(7)
    a(f"L_ci:\nv_readfirstlane_b32 s{T+3}, v121\ns_and_b32 s{T}, s{T+3}, 0xffff\ns_cmp_eq_u32 s{T}, 32\ns_cbranch_scc1 L_ci_ok")
    a(f"global_load_dword v121, v120, {sr(S_DBG,2)} sc1"); spin_check(a); a("s_sleep 1\ns_waitcnt vmcnt(0)\ns_branch L_ci")
    a("L_ci_ok:")
    for x in adv(S_KF, 0x40000): a(x)
    a(f"s_mov_b32 s{S_S}, 0\ns_waitcnt vmcnt(0)")
    a(f"ds_write_b128 v{V_LW}, {vr(KXS,4)} offset:{L_KX-L_MB}\nds_write_b128 v{V_LW}, {vr(KXS+4,4)} offset:{L_KX-L_MB+1024}")
    rt_stamp(a, opts, 2, 96)
    if prof:
        for i in range(8): a(f"s_mov_b32 s{88+i}, 0")
    a(f"s_cmp_gt_u32 s{T+3}, 0xffff\ns_cbranch_scc1 L_slowmode")
    for w in range(1, 4): a(f"s_cmp_eq_u32 s{S_W}, {w}\ns_cbranch_scc1 L_entry{w}")
    for w in range(4): gen_loop(a, opts, loc, w, "", str(w))
    a("L_slowmode:")
    for w in range(1, 4): a(f"s_cmp_eq_u32 s{S_W}, {w}\ns_cbranch_scc1 L_entrys{w}")
    for w in range(4): gen_loop(a, opts, loc, w, "sc1", "s" + str(w))
    a("L_chain_fin:")
    a(f"s_waitcnt vmcnt(0)\ns_barrier\ns_cmp_lg_u32 s{S_W}, 0\ns_cbranch_scc1 L_fin2\ns_mov_b64 exec, 1\nglobal_store_dword v{V_FL}, v{V_ONE}, {sr(S_WS,2)} sc1\ns_mov_b64 exec, -1\nL_fin2:")
    rt_stamp(a, opts, 3, 96)
    if opts.get('prof'):
        a(f"s_lshl_b32 s34, s96, 8\ns_lshl_b32 s35, s{S_W}, 6\ns_add_u32 s34, s34, s35\ns_add_u32 s34, s34, {hex(PROF + 32)}\nv_mov_b32 v16, s34")
        for i in range(8): a(f"v_mov_b32 v{20+i}, s{88+i}")
        a(f"global_store_dwordx4 v16, v[20:23], {sr(S_WS,2)}\nglobal_store_dwordx4 v16, v[24:27], {sr(S_WS,2)} offset:16")
        a(f"v_mov_b32 v17, s{S_SPIN}\nglobal_store_dword v16, v17, {sr(S_WS,2)} offset:-4")
    a("s_endpgm")

def gen_loop(a, opts, loc, w, st, sfx):
    T = S_T; H = S_RANK
    prof = opts.get('cyc')
    nohop = opts.get('nohop')
    def P(name, dflt):
        v = opts.get(name, dflt)
        return v[w] if isinstance(v, (tuple, list)) else v
    smap = opts.get('smap', {1: 1, 2: 2, 3: 3, 4: 4, 5: 5, 6: 6, 7: 7})
    def stamp(i):
        if prof and i in smap: a(f"{'s_memrealtime' if opts.get('abs') else 's_memtime'} s[{48+2*smap[i]}:{49+2*smap[i]}]")
    lg = Cnt(a, "lgkmcnt", 15)
    where = {}
    def wread(f, reg):
        k, b = loc[f]; assert k == 'l'
        where[f] = reg
        return [(f"ds_read_b128 {vr(reg,4)}, v{V_WL} offset:{b*2048}", ('w', f)), (f"ds_read_b128 {vr(reg+4,4)}, v{V_WL} offset:{b*2048+1024}", ('w', f))]
    def emit(x):
        if callable(x): x()
        elif isinstance(x, tuple): a(x[0]); lg.issue(x[1])
        else: a(x)
    def smf(acc, A, f):
        k, b = loc[f]
        B = vr(where[f], 8) if k == 'l' else (ar if k == 'a' else vr)(b, 8)
        a(f"v_smfmac_f32_16x16x64_bf16 {vr(acc,4)}, {vr(A,4)}, {B}, v{V_IDX}")
    QL = [('q', 0, 0), ('q', 1, 0), ('q', 0, 1), ('q', 1, 1)]
    KL = [('k', 0, 2), ('k', 1, 2), ('k', 0, 3), ('k', 1, 3)]
    def zero2(b, n): return [f"v_mov_b64 {vr(b+i,2)}, 0" for i in range(0, n, 2)]
    def dma(lbase, pair):
        return [f"s_mov_b32 m0, {hex(lbase + 2048*w)}", f"global_load_lds_dwordx4 v{V_LW}, {sr(pair,2)} sc1", f"global_load_lds_dwordx4 v{V_LW}, {sr(pair,2)} offset:1024 sc1"]
    def adv(pair, n): return [f"s_add_u32 s{pair}, s{pair}, {hex(n)}\ns_addc_u32 s{pair+1}, s{pair+1}, 0"]
    def warm(n, cold=False):
        for i in range(n):
            if cold or opts.get('nowarm'): a("s_nop 3")
            else: a(f"v_mov_b32 v{X0}, 0\ns_nop 2")
    def kind(x):
        if callable(x): return 1
        s_ = x[0] if isinstance(x, tuple) else x
        return 0 if s_.startswith(('ds_', 'global_')) else (2 if s_.startswith('v_') else 1)
    def run(ms, fill):
        for tg in ms[0][1]: lg.wait(tg)
        for i, (fn, _) in enumerate(ms):
            fn()
            items = fill.get(i, [])
            for x in fill.get(('pre', i), []): emit(x)
            for k in (0, 1):
                for x in items:
                    if kind(x) == k: emit(x)
            if i + 1 < len(ms):
                for tg in ms[i + 1][1]: lg.wait(tg)
            for x in items:
                if kind(x) == 2: emit(x)
            for x in fill.get(('post', i), []): emit(x)
    OWN = MEM
    ld2 = f"global_load_dwordx4 {vr(OWN,4)}, v{V_LW}, {sr(S_M,2)} sc1\nglobal_load_dwordx4 {vr(OWN+4,4)}, v{V_LW}, {sr(S_M,2)} offset:1024 sc1"
    chk2 = f"v_max3_u32 v{X0}, v{OWN}, v{OWN+1}, v{OWN+2}\nv_max3_u32 v{X1}, v{OWN+3}, v{OWN+4}, v{OWN+5}\nv_max3_u32 v{X0}, v{X0}, v{OWN+6}, v{OWN+7}\nv_max_u32 v{X0}, v{X0}, v{X1}\nv_cmp_eq_u32 vcc, -1, v{X0}"
    mw = [(f"ds_write_b128 v{V_LW}, {vr(OWN,4)}", 'mw'), (f"ds_write_b128 v{V_LW}, {vr(OWN+4,4)} offset:1024", 'mw')]
    ring = [f"s_mov_b64 {sr(S_PR,2)}, {sr(S_PL,2)}\ns_add_u32 s{S_RING}, s{S_RING}, 0x40000", f"s_and_b32 s{S_RING}, s{S_RING}, 0xc0000\ns_add_u32 s{T+2}, s{S_RING}, s{S_HOFF}",
            f"s_add_u32 s{S_PL}, s{S_PB}, s{T+2}\ns_addc_u32 s{S_PL+1}, s{S_PB+1}, 0", f"s_add_u32 s{T+2}, s{S_RING}, {hex(L_MB + 4096)}", f"s_add_u32 s{S_P}, s{S_PB}, s{T+2}\ns_addc_u32 s{S_P+1}, s{S_PB+1}, 0"]
    vxl = [f"global_load_dwordx4 {vr(VX+4*i,4)}, v{V_LW}, {sr(S_VF,2)} offset:{1024*i} sc1" for i in range(2)]
    kxl = [f"global_load_dwordx4 {vr(KXS+4*i,4)}, v{V_LW}, {sr(S_KF,2)} offset:{1024*i} sc1" for i in range(2)]
    kxw = [(f"ds_write_b128 v{V_LW}, {vr(KXS+4*i,4)} offset:{L_KX-L_MB+1024*i}", 'kxw') for i in range(2)]
    a(f"L_entry{sfx}:")
    for i, f in enumerate(QL):
        for x in wread(f, WIN + 8 * i): emit(x)
    for x in zero2(AQ, 24) + ring: a(x)
    a("s_waitcnt vmcnt(0)"); lg.waitall()
    a(f".p2align 6\nL_step{sfx}:")
    if prof: a(("s_memrealtime" if opts.get('abs') else "s_memtime") + " s[32:33]")
    RA = QOP; KMOP = MEM; PUB = AK + 4
    fill = {}
    drop = opts.get('drop', ())
    def F(g, *xs):
        for x in xs:
            s_ = x[0] if isinstance(x, tuple) else x
            if not callable(x) and any(d in s_ for d in drop): continue
            fill.setdefault(g, []).append(x)
    def S(acc, mat, t, u):
        f = (mat, t, u)
        tags = ([('m', u)] if u >= 2 else []) + ([('w', f)] if loc[f][0] == 'l' else [])
        return (lambda: smf(acc + 4 * t, MEM + 4 * u, f), tags)
    def B(acc, mat, us): return [S(acc, mat, t, u) for u in us for t in range(2)]
    def post_T(acc):
        s_ = [f"v_permlane32_swap_b32 v{acc+r}, v{acc+4+r}" for r in range(4)]
        s_ += [f"v_add_f32 v{acc+r}, v{acc+r}, v{acc+4+r}" for r in range(4)]
        s_ += [f"v_cvt_pk_bf16_f32 v{acc+4}, v{acc}, v{acc+1}", f"v_cvt_pk_bf16_f32 v{acc+5}, v{acc+2}, v{acc+3}"]
        return s_
    def tr(dst, off, tag): return (f"ds_read_b64_tr_b16 {vr(dst,2)}, v{V_TR} offset:{off}", tag)
    def mrd(u): return (f"ds_read_b128 {vr(MEM+4*u,4)}, v{V_MBR} offset:{2048*((u>>1)^w)+1024*(u&1)}", ('m', u))
    def accum():
        if prof and opts.get('abs'):
            a(f"s_cmp_lg_u32 s{S_S}, {opts['abs']}\ns_cbranch_scc1 L_noacc{sfx}")
            for i in range(7): a(f"s_mov_b32 s{88+i}, s{50+2*i}")
            a(f"s_mov_b32 s95, s32\nL_noacc{sfx}:\ns_mov_b32 s48, s32")
        elif prof:
            a(f"s_cmp_lt_u32 s{S_S}, {prof}\ns_cbranch_scc1 L_noacc{sfx}")
            for i in range(7): a(f"s_sub_u32 s34, s{50+2*i}, s{48+2*i}\ns_add_u32 s{88+i}, s{88+i}, s34")
            a(f"s_sub_u32 s34, s32, s62\ns_add_u32 s95, s95, s34")
            a(f"L_noacc{sfx}:\ns_mov_b32 s48, s32")
    lg.reset()
    off = 0
    ms = B(AQ, 'q', (0, 1)) + B(AK, 'k', (0, 1)) + B(AV, 'v', (0, 1))
    ms += B(AQ, 'q', range(2, 8)) + B(AK, 'k', range(2, 8)) + B(AV, 'v', range(2, 8))
    def XS(ks, kt): return (lambda: a(f"v_mfma_f32_16x16x32_bf16 {vr(AQ+4*kt,4)}, {vr(WIN+8*ks+4*kt,4)}, {vr(QOP+4*ks,4)}, " + ("0" if ks == 0 else vr(AQ + 4 * kt, 4))), [('qop', ks)])
    ms += [XS(ks, kt) for ks in range(4) for kt in range(2)]
    def MS(ks): return (lambda: a(f"v_mfma_f32_16x16x32_bf16 {vr(AK,4)}, {vr(KMOP+4*ks,4)}, {vr(QOP+4*ks,4)}, " + ("0" if ks == 0 else vr(AK, 4))), [('kmop', ks)])
    ms += [MS(ks) for ks in range(4)]
    F(0, mw[0]); F(1, mw[1])
    F(2, f"v_readlane_b32 s{T+1}, v{V_PFD}, 48"); F(3, f"v_mov_b64 {vr(RA,2)}, -1"); F(4, f"v_mov_b64 {vr(RA+2,2)}, -1")
    F(4, f"s_cmp_eq_u32 s{T+1}, 0x01010101\ns_cbranch_scc0 L_flag_slow{sfx}\nL_flag_ok{sfx}:")
    B0 = opts.get('b0', 7)
    F(('pre', B0), lambda: (lg.waitall() if prof else lg.wait('mw'), accum(), a("s_barrier"), stamp(1)))
    for u in range(2, 8): F(B0 + max(0, u - 3), mrd(u))
    F(('pre', 11), "s_waitcnt vmcnt(0)"); F(11, vxl[0])
    sw = w if opts.get('stag', 1) else 0
    kf = []
    for i, f in enumerate(KL): kf += wread(f, WIN + 8 * i)
    F(12, vxl[1])
    for g, x in zip((2, 3, 4, 5, 13, 14, 15, 16), kf): F(g, x)
    F(opts.get('kxg', 17) + (sw & 1), kxl[0]); F(opts.get('kxg', 17) + 2 + (sw & 1), kxl[1])
    rearm = [f"global_store_dwordx4 v{V_LW}, {vr(RA,4)}, {sr(S_PR,2)} offset:{1024*jj} {st}" for jj in range(2)]
    kxr = [(f"ds_read_b128 {vr(WIN+8*ks+4*kt,4)}, v{V_MBR} offset:{L_KX-L_MB+(kt*4+ks)*1024}", 'kx') for ks in range(4) for kt in range(2)]
    rag = opts.get('rag', (26, 30))
    vslots = [rag[0] + sw, rag[1] + sw]
    kg = [g for g in range(25, 35) if g not in vslots]
    for g, x in zip(kg, kxr): F(g, x)
    F(vslots[0], rearm[0]); F(vslots[1], rearm[1])
    for i, x in enumerate(post_T(AQ)): F(25 + i, x)
    F(35, (f"ds_write_b64 v{V_TW}, {vr(AQ+4,2)}", 'tq'))
    F(opts.get('pfg', 36), f"global_load_dword v{V_PFD}, v{V_PF}, {sr(S_WS,2)} sc1"); F(37, *adv(S_VF, 0x40000)); F(38, *adv(S_M, 8192)); F(39, *adv(S_MS, 8192))
    pk = post_T(AK)
    for g, x in zip(opts.get('kp', [37, 38, 39, 40, 41, 42, 43, 44, 45, 45]), pk): F(g, x)
    TKW = opts.get('tkw', 46); B1 = opts.get('b1', 41); B2 = opts.get('b2', 52)
    F(TKW, (f"ds_write_b64 v{V_TW}, {vr(AK+4,2)} offset:2048", 'tk'))
    F(('pre', B1), lambda: (lg.waitall(), a("s_barrier"), stamp(2)))
    qg = opts.get('qg', [41, 41, 42, 42, 43, 43, 44, 44])
    for i in range(8): F(qg[i], tr(QOP + 2 * i, 512 * (i >> 1) + 64 * (i & 1), ('qop', i >> 1)))
    F(48, *adv(S_KF, 0x40000)); F(47, f"v_add_u32 v{V_PF}, v{V_PF}, v{V_PFS}")
    if w == opts.get('flw', 0):
        F(49, f"s_mov_b64 exec, 1\nglobal_store_dword v{V_FL}, v{V_ONE}, {sr(S_WS,2)} sc1\ns_mov_b64 exec, -1")
    F(51, f"v_add_u32 v{V_FL}, 4, v{V_FL}")
    if w == 1 and opts.get('steps'):
        F(44, "s_memrealtime s[32:33]")
        F(('post', 53), f"s_lshl_b32 s34, s{H}, 8\ns_lshl_b32 s35, s{S_S}, 2\ns_add_u32 s34, s34, s35\ns_add_u32 s34, s34, {hex(PROF + 0x20000)}\nv_mov_b32 v{X0}, s34\nv_mov_b32 v{X1}, s32\ns_mov_b64 exec, 1\nglobal_store_dword v{X0}, v{X1}, {sr(S_WS,2)}\ns_mov_b64 exec, -1")
    F(('pre', B2), lambda: (lg.waitall(), a("s_barrier"), stamp(3)))
    for ks in range(4):
        F(B2 + (ks + 1) // 2, tr(KMOP + 4 * ks, 2048 + 512 * ks, ('kmop', ks)), tr(KMOP + 4 * ks + 2, 2048 + 512 * ks + 64, ('kmop', ks)))
    of2 = []; of3 = {}
    for x in range(4): of2 += wread(('o', 2, x), WIN + 8 * x)
    o3order = [w] + [x for x in range(4) if x != w]
    of3 = []
    for x, reg in zip(o3order, (MEM + 16, MEM + 24, MEM, MEM + 8)): of3 += wread(('o', 3, x), reg)
    for g in [g for g in (55, 56, 57, 58, 59) if g != 56 + w]: F(g, of3.pop(0))
    F(49, f"v_cvt_pk_bf16_f32 v{AV}, v{AV}, v{AV+1}", f"v_cvt_pk_bf16_f32 v{AV+1}, v{AV+2}, v{AV+3}")
    F(50, f"v_cvt_pk_bf16_f32 v{AV+2}, v{AV+4}, v{AV+5}", f"v_cvt_pk_bf16_f32 v{AV+3}, v{AV+6}, v{AV+7}")
    F(P('vmg', 51), f"global_store_dwordx4 v{V_LW}, {vr(AV,4)}, {sr(S_KM,2)} offset:1024 sc1")
    F(53, f"v_mov_b64 {vr(AV+4,2)}, {sr(S_ONES,2)}"); F(54, f"v_mov_b64 {vr(AV+6,2)}, {sr(S_ONES,2)}"); F(55, f"v_mov_b64 {vr(AK+6,2)}, {sr(S_HALF,2)}")
    F(56, f"v_max3_f32 v{MX}, v{AQ}, v{AQ+1}, v{AQ+2}"); F(57, f"v_max3_f32 v{MX}, v{MX}, v{AQ+3}, v{AQ+4}"); F(58, f"v_max3_f32 v{MX}, v{MX}, v{AQ+5}, v{AQ+6}"); F(59, f"v_max_f32 v{MX}, v{MX}, v{AQ+7}")
    F(56 + w, f"global_store_dwordx4 v{V_LW}, {vr(KMOP+4*w,4)}, {sr(S_KM,2)} sc1")
    F(59, f"s_cmp_eq_u32 s{S_S}, 63\ns_cbranch_scc1 L_chain_fin")
    for g in range(4, 60): F(('pre', g), lambda g=g: stamp(100 + g))
    run(ms, fill)
    stamp(200)
    T0 = X0
    OA, LA, HF_, ONES = QOP, QOP + 8, AK + 6, AV + 4
    a(f"v_max3_f32 v{MX}, v{MX}, v{AK}, v{AK+1}\nv_max3_f32 v{MX}, v{MX}, v{AK+2}, v{AK+3}\nv_mov_b32 v{T0}, v{MX}")
    for y in adv(S_KM, 0x40000): a(y)
    a(f"v_permlane16_swap_b32 v{MX}, v{T0}\nv_max_f32 v{MX}, v{MX}, v{T0}\nv_mov_b32 v{T0}, v{MX}\ns_add_u32 s{S_S}, s{S_S}, 1")
    a(f"v_permlane32_swap_b32 v{MX}, v{T0}\nv_max_f32 v{MX}, v{MX}, v{T0}\nv_mul_f32 v{T0}, s{S_C}, v{MX}")
    pf = lambda r: f"v_pk_fma_f32 {vr(r,2)}, {vr(r,2)}, {sr(S_C,2)}, {vr(T0,2)} op_sel_hi:[1,1,0] neg_lo:[0,0,1] neg_hi:[0,0,1]"
    stamp(201)
    for r in (AQ, AQ + 2, AQ + 4, AQ + 6, AK, AK + 2): a(pf(r))
    for r in range(8): a(f"v_exp_f32 v{AQ+r}, v{AQ+r}")
    for r in range(4): a(f"v_cvt_pk_bf16_f32 v{AQ+r}, v{AQ+2*r}, v{AQ+2*r+1}")
    a(f"v_exp_f32 v{AK}, v{AK}\nv_exp_f32 v{AK+1}, v{AK+1}")
    stamp(202)
    a(f"v_mfma_f32_16x16x32_bf16 {vr(LA,4)}, {vr(ONES,4)}, {vr(AQ,4)}, 0")
    a(f"s_waitcnt vmcnt({7 + (1 if w == opts.get('flw', 0) else 0)})")
    a(f"v_exp_f32 v{AK+2}, v{AK+2}")
    a(f"v_mfma_f32_16x16x32_bf16 {vr(OA,4)}, {vr(VX,4)}, {vr(AQ,4)}, 0")
    a(f"v_exp_f32 v{AK+3}, v{AK+3}")
    a(f"v_mfma_f32_16x16x32_bf16 {vr(OA+4,4)}, {vr(VX+4,4)}, {vr(AQ,4)}, 0")
    a(f"v_cvt_pk_bf16_f32 v{AK}, v{AK}, v{AK+1}\nv_cvt_pk_bf16_f32 v{AK+1}, v{AK+2}, v{AK+3}")
    WACC = AK
    a(f"v_mov_b64 {vr(WACC+12,2)}, 0\nv_mov_b64 {vr(WACC+14,2)}, 0")
    a(f"v_mfma_f32_16x16x16_bf16 {vr(LA,4)}, {vr(HF_,2)}, {vr(AK,2)}, {vr(LA,4)}")
    emit(of2[2 * w]); a(f"v_mov_b64 {vr(WACC+2,2)}, 0")
    a(f"v_mfma_f32_16x16x16_bf16 {vr(OA,4)}, {vr(AV,2)}, {vr(AK,2)}, {vr(OA,4)}")
    emit(of2[2 * w + 1]); a(f"v_mov_b64 {vr(WACC+4,2)}, 0")
    of2 = [x for i, x in enumerate(of2) if i // 2 != w]
    a(f"v_mfma_f32_16x16x16_bf16 {vr(OA+4,4)}, {vr(AV+2,2)}, {vr(AK,2)}, {vr(OA+4,4)}")
    emit(of2.pop(0))
    stamp(203)
    a(f"v_rcp_f32 v{T0}, v{LA}")
    for x in zero2(WACC + 6, 2) + zero2(WACC, 2) + zero2(WACC + 8, 4): a(x)
    for r in range(0, 8, 2): a(f"v_pk_mul_f32 {vr(OA+r,2)}, {vr(OA+r,2)}, {vr(T0,2)} op_sel_hi:[1,0]")
    for r in range(4): a(f"v_cvt_pk_bf16_f32 v{AQ+r}, v{OA+r}, v{OA+4+r}")
    emit((f"ds_write_b128 v{V_LW}, {vr(AQ,4)}", 'ow'))
    stamp(204)
    OOP = QOP
    off = 0
    pst = lambda j: f"global_store_dwordx2 v{V_PST}, {vr(WACC+4*j,2)}, {sr(S_P,2)} offset:{2048*j-4096} {st}"
    def pcv(j):
        b = WACC + 4 * j
        return [f"v_cvt_pk_bf16_f32 v{b}, v{b}, v{b+1}", f"v_cvt_pk_bf16_f32 v{b+1}, v{b+2}, v{b+3}"]
    def W(j, x):
        f = ('o', j, x)
        tags = ([('oop', x)] if x != w else []) + ([('w', f)] if loc[f][0] == 'l' else [])
        return (lambda: smf(WACC + 4 * j, AQ if x == w else OOP + 4 * x, f), tags)
    oth = [x for x in range(4) if x != w]
    ms = [W(j, w) for j in range(4)] + [W(j, x) for j in range(4) for x in oth]
    fill = {}
    B3 = opts.get('b3', 2)
    F(('pre', B3), lambda: (lg.wait('ow'), a("s_barrier"), stamp(4)))
    for x in oth: F(B3, (f"ds_read_b128 {vr(OOP+4*x,4)}, v{V_MBR} offset:{2048*x}", ('oop', x)))
    o13 = wread(('o', 1, 3), VX)
    if w == 3:
        for x in o13: emit(x)
        ms = [ms[0], ms[2], ms[3], ms[1]] + ms[4:]
        rest = of2 + of3
        for g in (B3, B3, 4, 5, 6, 7, 8, 10, 11): F(g, rest.pop(0))
    else:
        rest = o13 + of2 + of3
        for g in (0, 1, B3, B3, 4, 5, 6, 7, 8, 10, 11): F(g, rest.pop(0))
    assert not rest, rest
    SEL = VX
    F(8, *pcv(0)); F(9, pst(0)); F(11, *pcv(1)); F(12, pst(1)); F(14, *pcv(2)); F(15, pst(2))
    qfr = []
    for i, f in enumerate(QL): qfr += wread(f, WIN + 8 * i)
    F(13, qfr.pop(0)); F(14, qfr.pop(0)); F(15, qfr.pop(0), qfr.pop(0))
    for g in range(16): F(('pre', g), lambda g=g: stamp(300 + g))
    run(ms, fill)
    for x in pcv(3): a(x)
    a(pst(3))
    for x in qfr: emit(x)
    emit((f"ds_read_b128 {vr(SEL,4)}, v{V_MBR} offset:{L_SEL-L_MB}", 'sel'))
    stamp(5)
    PB = QOP
    R = VX + 4
    K = P('k1', 2)
    ldp = f"global_load_dwordx4 {vr(PB,4)}, v{V_LW}, {sr(S_PL,2)} sc1\nglobal_load_dwordx4 {vr(PB+4,4)}, v{V_LW}, {sr(S_PL,2)} offset:1024 sc1"
    zs = zero2(AQ, 24)
    def delay(n, cold=False):
        for i in range(n):
            if len(zs) >= 4:
                for k in range(4): a(zs.pop(0))
            else: warm(1, cold)
    delay(P('d1', (7, 10, 13, 16)), opts.get('cold2'))
    for i in range(K):
        a(ldp)
        if i < K - 1: delay(P('g1', 9))
    lg.waitall()
    a(f"s_waitcnt vmcnt({6 + 2 * K + (1 if w == opts.get('flw', 0) else 0)})")
    for x in kxw: emit(x)
    while zs: a(zs.pop(0))
    delay(P('w1', 1))
    chk1 = f"v_max3_u32 v{X0}, v{PB}, v{PB+1}, v{PB+2}\nv_max3_u32 v{X1}, v{PB+3}, v{PB+4}, v{PB+5}\nv_max3_u32 v{X0}, v{X0}, v{PB+6}, v{PB+7}\nv_max_u32 v{X0}, v{X0}, v{X1}\nv_cmp_eq_u32 vcc, -1, v{X0}"
    red = f"v_mfma_f32_16x16x32_bf16 {vr(R,4)}, {vr(PB,4)}, {vr(SEL,4)}, 0\nv_mfma_f32_16x16x32_bf16 {vr(R,4)}, {vr(PB+4,4)}, {vr(SEL,4)}, {vr(R,4)}"
    def retry_loop(lab, chk, ld, ok, unroll=3, every=1):
        a(f"{lab}:")
        for i in range(unroll):
            if i % every == 0: a("s_mov_b64 exec, vcc\n" + ld + "\ns_mov_b64 exec, -1")
            a(chk + f"\ns_cbranch_vccz {ok}")
        a("s_waitcnt vmcnt(32)")
        spin_check(a)
        a(f"s_branch {lab}")
    a(f"s_waitcnt vmcnt({2*K-2})")
    a(chk1 + "\n" + ("s_nop 0" if nohop else f"s_cbranch_vccnz L_hop1_{sfx}") + f"\nL_hop1_ok{sfx}:\n" + red)
    stamp(6)
    a(f"v_permlane32_swap_b32 v{R}, v{R+1}\nv_permlane32_swap_b32 v{R+2}, v{R+3}\nv_add_f32 v{R}, v{R}, v{R+1}\nv_add_f32 v{R+2}, v{R+2}, v{R+3}")
    a(f"v_permlane16_swap_b32 v{R}, v{R+2}\nv_add_f32 v{R}, v{R}, v{R+2}")
    a(f"v_mov_b32_dpp v{R+1}, v{R} row_shl:4 row_mask:0xf bank_mask:0xf")
    a(f"v_cvt_pk_bf16_f32 v{R}, v{R}, v{R+1}\ns_mov_b64 exec, {sr(S_EM,2)}\nv_min_u32 v{R}, 0xfffffffe, v{R}")
    a(f"global_store_dword v{V_MST}, v{R}, {sr(S_MS,2)} {st}\ns_mov_b64 exec, -1")
    stamp(7)
    for x in ring: a(x)
    warm(P('d2', 12) - 2, opts.get('cold2'))
    n2 = P('k2', 2)
    for i in range(n2):
        a(ld2)
        if i < n2 - 1: warm(P('g2', 9))
    warm(P('w2', 3))
    lg.waitall()
    a(f"s_waitcnt vmcnt({2*n2-2})\n" + chk2 + "\n" + (f"s_branch L_step{sfx}" if nohop else f"s_cbranch_vccz L_step{sfx}"))
    retry_loop(f"L_hop2_{sfx}", chk2, ld2, f"L_step{sfx}", 4, P('ev', 2))
    retry_loop(f"L_hop1_{sfx}", chk1, ldp, f"L_hop1_ok{sfx}", 4, P('ev', 2))
    a(f"L_flag_slow{sfx}:")
    a(f"s_cmp_ge_u32 s{S_S}, 63\ns_cbranch_scc1 L_flag_ok{sfx}")
    a(f"s_lshl_b32 s{T}, s{H}, 6\ns_add_u32 s{T}, s{T}, s{S_S}\ns_lshl_b32 s{T}, s{T}, 2\ns_add_u32 s{T}, s{T}, {hex(KVFLAG+4)}\nv_mov_b32 v{X0}, s{T}\nv_mov_b32 v{X1}, 0x01010101")
    wait_flag(a, f"v{X0}", S_WS, f"v{X1}", f"v{V_PFD}", sleep=1)
    a(f"s_branch L_flag_ok{sfx}")
```

```python
import sys
from common import *
from gen_chain import gen_chain
from gen_worker import gen_worker

KNAME = NAME + "_kernel"
S_BLK = 97
def gen_main(a, opts):
    T = S_T
    head(a, KNAME)
    a("s_cmp_ge_u32 s2, 256\ns_cbranch_scc1 L_end")
    a("s_load_dwordx4 s[4:7], s[0:1], 0\ns_load_dwordx8 s[8:15], s[0:1], 16\ns_load_dwordx4 s[16:19], s[0:1], 64\ns_load_dwordx8 s[20:27], s[0:1], 80")
    a(f"s_getreg_b32 s{S_XCC}, hwreg(HW_REG_XCC_ID)\ns_and_b32 s{S_XCC}, s{S_XCC}, 15")
    if opts.get('spoof') == 1: a(f"s_lshr_b32 s{S_BLK}, s2, 5")
    elif opts.get('spoof') == 2: a(f"s_and_b32 s{S_BLK}, s2, 3\ns_add_u32 s{S_BLK}, s{S_BLK}, 2")
    else: a(f"s_and_b32 s{S_BLK}, s{S_XCC}, 7")
    a(f"v_lshrrev_b32 v1, 6, v0\nv_readfirstlane_b32 s{S_W}, v1\nv_and_b32 v0, 63, v0")
    a(f"s_mov_b32 s{S_PLO}, 0x05040100\ns_mov_b32 s{S_PHI}, 0x07060302\ns_mov_b32 s{S_SPIN}, 0")
    a(f"s_lshl_b32 s{T}, s{S_BLK}, 2\ns_cmp_eq_u32 s{S_BLK}, 0\ns_cselect_b32 s{T}, {D_RANK0*4}, s{T}\nv_mov_b32 v3, s{T}\nv_mov_b32 v4, 1\nv_mov_b32 v5, 0")
    a("s_waitcnt lgkmcnt(0)")
    a(f"s_cmp_lg_u32 s{S_W}, 0\ns_cbranch_scc1 L_norank")
    a(f"s_mov_b64 exec, 1\nglobal_atomic_add v6, v3, v4, {sr(S_DBG,2)} sc0\ns_mov_b64 exec, -1")
    a("L_norank:")
    a(f"s_cmp_eq_u32 s{S_BLK}, 0\ns_cbranch_scc1 L_nopf")
    pfm = [dict(q=S_WQ, k=S_WK, v=S_WV, o=S_WO)[c] for c in opts.get('pf', 'qo')]
    a(f"s_lshl_b32 s{T}, s2, 2\ns_add_u32 s{T}, s{T}, s{S_W}\ns_lshl_b32 s{T}, s{T}, 12\nv_lshlrev_b32 v7, 4, v0\nv_add_u32 v7, s{T}, v7")
    for m, base in enumerate(pfm):
        for k in range(4): a(f"global_load_dwordx4 {vr(128+16*m+4*k,4)}, v7, {sr(base,2)} offset:{1024*k}")
    nw = nc = 0
    if opts.get('ipf', 1): nw = code_prefetch(a, "L_worker", "L_end", 49152, "v250", "v251")
    a("s_branch L_pfd\nL_nopf:")
    if opts.get('ipf', 1): nc = code_prefetch(a, "L_pfd", "L_entry0", 16384, "v250", "v251")
    a("L_pfd:")
    a(f"s_cmp_lg_u32 s{S_W}, 0\ns_cbranch_scc1 L_norank2")
    a(f"s_cmp_eq_u32 s{S_BLK}, 0\ns_cbranch_scc1 L_rk0\ns_waitcnt vmcnt({4*len(pfm)+nw})\ns_branch L_rk1\nL_rk0:\ns_waitcnt vmcnt({nc})\nL_rk1:")
    a(f"v_readfirstlane_b32 s{S_RANK}, v6\ns_mov_b32 s{T+1}, 0\ns_mov_b64 exec, 1")
    a(f"L_steal:\ns_cmp_lt_u32 s{S_RANK}, 32\ns_cbranch_scc1 L_gotrole")
    a(f"s_add_u32 s{T+1}, s{T+1}, 1\ns_cmp_gt_u32 s{T+1}, 8\ns_cbranch_scc1 L_gotrole\ns_and_b32 s{S_BLK}, s{T+1}, 7")
    a(f"s_lshl_b32 s{T}, s{S_BLK}, 2\ns_cmp_eq_u32 s{S_BLK}, 0\ns_cselect_b32 s{T}, {D_RANK0*4}, s{T}\nv_mov_b32 v3, s{T}")
    a(f"global_atomic_add v6, v3, v4, {sr(S_DBG,2)} sc0\ns_waitcnt vmcnt(0)\nv_readfirstlane_b32 s{S_RANK}, v6\ns_branch L_steal")
    a(f"L_gotrole:\ns_min_u32 s{S_RANK}, s{S_RANK}, 32\ns_lshl_b32 s{T}, s{S_BLK}, 8\ns_or_b32 s{T}, s{T}, s{S_RANK}\nv_mov_b32 v6, s{T}\nds_write_b32 v5, v6\ns_waitcnt lgkmcnt(0)\ns_mov_b64 exec, -1")
    a(f"L_norank2:\ns_barrier\nds_read_b32 v6, v5\ns_waitcnt lgkmcnt(0)\nv_readfirstlane_b32 s{T}, v6\ns_barrier")
    a(f"s_and_b32 s{S_RANK}, s{T}, 0xff\ns_lshr_b32 s{S_BLK}, s{T}, 8")
    a(f"s_cmp_ge_u32 s{S_RANK}, 32\ns_cbranch_scc1 L_fail")
    a(f"s_lshl_b32 s96, s{S_BLK}, 5\ns_add_u32 s96, s96, s{S_RANK}")
    rt_stamp(a, opts, 0, 96)
    a(f"s_cmp_lg_u32 s{S_BLK}, 0\ns_cbranch_scc1 L_worker")
    a.role = 'c'
    import importlib
    importlib.import_module(opts.get('chain', 'gen_chain')).gen_chain(a, opts)
    a.role = 'w'
    a("L_worker:")
    gen_worker(a, opts)
    a("L_fail:")
    a(f"s_mov_b64 exec, 1\nv_mov_b32 v1, {D_FAIL*4}\nv_mov_b32 v2, 1\nglobal_atomic_add v1, v2, {sr(S_DBG,2)}\ns_waitcnt vmcnt(0)")
    a("L_end:\ns_endpgm")

HEADER = open("cdna_kernels/%s.s.ref" % NAME).read().split("; Override launch")[0] if __name__ == "__main__" or True else ""

def build(opts=None, listform=True):
    opts = opts or {}
    a = Asm()
    gen_main(a, opts)
    body = a.finish()
    txt = HEADER
    if listform: txt += "; @launch kernel=%s grid=(256,1,1) block=(256,1,1) lds=163840\n" % KNAME
    else: txt += "; @launch grid=(256,1,1) block=(256,1,1) lds=163840\n"
    txt += '.amdgcn_target "amdgcn-amd-amdhsa--gfx950"\n.text\n' + body
    txt += kd(KNAME, 512, 102, 256)
    return txt

if __name__ == "__main__":
    opts = eval(sys.argv[2]) if len(sys.argv) > 2 else {}
    out = sys.argv[1] if len(sys.argv) > 1 else "cdna_kernels/%s.s" % NAME
    open(out, "w").write(build(opts, listform=len(sys.argv) > 1 and not opts.get("dbgstamp")))
    print("wrote", out)
```
